```python
import torch

def _softmax(x, axis=-1):
    return torch.softmax(x, dim=axis)
def _gelu(x):
    return torch.nn.functional.gelu(x, approximate="tanh")
def _silu(x):
    return torch.nn.functional.silu(x)
def _sigmoid(x):
    return torch.sigmoid(x)
def _layernorm(x, axis=-1, eps=1e-5):
    m = x.mean(dim=axis, keepdim=True)
    v = x.var(dim=axis, keepdim=True, unbiased=False)
    return (x - m) / torch.sqrt(v + eps)
def _scatter_add(tgt, idx, src, axis=0):
    return tgt.clone().index_add_(axis, idx, src)
def _segment_sum(src, seg, n):
    out = torch.zeros((n,) + src.shape[1:], dtype=src.dtype)
    return out.index_add_(0, seg, src)
def _pad(x, pw):
    flat = tuple(v for pair in reversed(pw) for v in pair)
    return torch.nn.functional.pad(x, flat)

kernel_name = 'standalone__weight_only_int_quip_2__prompt'

def setup_inputs():

    _w = (lambda a: (lambda t: t.to(torch.bfloat16) if t.is_floating_point() else t)(torch.as_tensor(a)))
    B, S, D, F = 1, 2048, 576, 4608
    nbits = max(2, min(4, int(4)))
    G = 64 if 64 > 0 else D
    D = (D // G) * G
    ng = D // G
    qmax = 1 << nbits
    qw = torch.randint(0, qmax, (D, F)).to(torch.int32)
    zp = torch.randint(0, qmax, (ng, F)).to(float)
    sc = torch.abs((lambda *s: torch.randn(*s, dtype=torch.bfloat16) * 0.05)(ng, F)).to(float) * 0.1 + 0.02
    return {
        "x": _w((lambda *s: torch.randn(*s, dtype=torch.bfloat16) * 0.05)(B, S, D)),
        "qw": _w(qw),
        "scales": _w(sc),
        "zeros": _w(zp),
    }

def reference(x, qw, scales, zeros):
    B, S, D = x.shape
    ng, F = scales.shape
    G = D // ng
    s = (lambda x, n, axis: torch.repeat_interleave(x, n, dim=axis))(scales, G, axis=0)
    z = (lambda x, n, axis: torch.repeat_interleave(x, n, dim=axis))(zeros, G, axis=0)
    w = ((lambda x, dt: x.to(dt))(qw, x.dtype) - z) * s
    return torch.einsum("bsd,df->bsf", x, w)
```

```python
import sys, argparse

M, K, N = 2048, 576, 4608
NG = 9
BM, BN = 256, 144
KNAME = "standalone__weight_only_int_quip_2__prompt_kernel"

class Gen:
    def __init__(self, cfg):
        self.cfg = cfg
        self.L = []
        self.vmq = []
        self.lgq = []
    def e(self, s):
        self.L.append("    " + s)
    def label(self, s):
        self.L.append(s + ":")
    def c(self, s):
        self.L.append("    ; " + s)
    def vm(self, s, tag):
        self.e(s); self.vmq.append(tag)
        assert len(self.vmq) <= 63, "too many VMEM outstanding: %d" % len(self.vmq)
    def ds(self, s, tag):
        self.e(s); self.lgq.append(tag)
    def need(self, vmtags=(), lgtags=()):
        w = []
        nv = None
        for t in vmtags:
            idx = [i for i, x in enumerate(self.vmq) if x == t]
            if idx:
                n = len(self.vmq) - 1 - idx[-1]
                nv = n if nv is None else min(nv, n)
        if nv is not None:
            self.vmq = self.vmq[len(self.vmq) - nv:] if nv else []
            w.append("vmcnt(%d)" % nv)
        nl = None
        for t in lgtags:
            idx = [i for i, x in enumerate(self.lgq) if x == t]
            if idx:
                n = len(self.lgq) - 1 - idx[-1]
                nl = n if nl is None else min(nl, n)
        if nl is not None:
            nl = min(nl, 15)
            self.lgq = self.lgq[len(self.lgq) - nl:] if nl else []
            w.append("lgkmcnt(%d)" % nl)
        if w:
            self.e("s_waitcnt " + " ".join(w))

def magic(d, maxv):
    for sh in range(8, 24):
        mul = ((1 << sh) + d - 1) // d
        if all(((v * mul) >> sh) == v // d for v in range(maxv + 1)):
            assert maxv * mul < (1 << 32) and mul < (1 << 24)
            return mul, sh
    raise Exception("no magic")

def build(cfg):
    phases = cfg["phases"]
    assert sum(phases) == 9
    NS = cfg["ns"]
    LEADX = cfg["leadx"]
    FPG = cfg["fpg"]
    Tmax = max(phases)
    Ts = sorted(set(phases))
    pbase = [16 * sum(phases[:i]) for i in range(len(phases))]
    chunks = [(p, g) for p in range(len(phases)) for g in range(NG)]
    NCH = len(chunks)
    SLOT = Tmax * 2048
    RING = 3
    TABF = RING * SLOT
    TABG = TABF + NG * BN * 8
    FLAGS = TABG + NG * BN * 8
    LDS_BYTES = FLAGS + 16
    nv = [0]
    def valloc(n, align=1):
        b = (nv[0] + align - 1) // align * align
        nv[0] = b + n
        return b
    V_TID = valloc(1)
    v_x = valloc(1)
    v_r0 = valloc(1); v_r1 = valloc(1)
    v_q = {T: valloc(4) for T in Ts}
    v_w = {T: valloc(T) for T in Ts}
    v_s = {T: valloc(1) for T in Ts}
    v_o = {T: valloc(1) for T in Ts}
    v_tmp = valloc(8, 4)
    v_d = valloc(4, 4)
    v_sc = valloc(2 * 2 * Tmax, 4)
    v_fr = valloc(16, 4)
    RS = (Tmax + 1) // 2 * 2 if Tmax > 1 else 2
    if Tmax == 3: RS = 4
    v_st = valloc(NS * 4 * RS, 4)
    v_xo = valloc(32, 4)
    nbanks = 2 if len(phases) > 1 else 1
    bank_sz = [0] * nbanks
    for i, T in enumerate(phases):
        bank_sz[i % nbanks] = max(bank_sz[i % nbanks], 16 * T)
    v_acc = [valloc(b, 4) for b in bank_sz]
    NVG = nv[0]
    assert NVG <= 256, "VGPR overflow %d" % NVG
    vt = v_st

    g = Gen(cfg)
    L = g.L
    hdr = []
    hdr.append("; W4A16-style dequant GEMM, generated by gen/gen.py  cfg=%s" % (cfg,))
    hdr.append("; @launch grid=(256,1,1) block=(256,1,1) lds=%d" % LDS_BYTES)
    hdr.append('.amdgcn_target "amdgcn-amd-amdhsa--gfx950"')
    hdr.append(".text")
    hdr.append(".globl %s" % KNAME)
    hdr.append(".p2align 8")
    hdr.append(".type %s,@function" % KNAME)
    hdr.append("%s:" % KNAME)

    S_X, S_Q, S_SC, S_Z, S_O = 16, 20, 24, 28, 32
    s_w = 36; s_nblk = 37; s_mblk = 38
    s_xo = 40
    s_oo = 44
    s_q0 = 48
    s_t0 = 50; s_t1 = 51; s_t2 = 52; s_t3 = 53
    s_qs = 54
    s_os = 55
    s_bad = 56
    s_sv = 58
    s_c24 = 60

    e = g.e
    e("s_cmp_ge_u32 s2, 256")
    e("s_cbranch_scc1 L_end")
    e("s_load_dwordx4 s[4:7], s[0:1], 0")
    e("s_load_dwordx4 s[8:11], s[0:1], 16")
    e("s_load_dwordx2 s[12:13], s[0:1], 32")
    e("v_lshrrev_b32 v%d, 6, v0" % v_tmp)
    e("s_and_b32 s%d, s2, 7" % s_t0)
    e("s_lshr_b32 s%d, s2, 3" % s_t1)
    e("v_readfirstlane_b32 s%d, v%d" % (s_w, v_tmp))
    e("s_and_b32 s%d, s%d, 3" % (s_t2, s_t1))
    e("s_lshl_b32 s%d, s%d, 2" % (s_nblk, s_t0))
    e("s_add_u32 s%d, s%d, s%d" % (s_nblk, s_nblk, s_t2))
    e("s_lshr_b32 s%d, s%d, 2" % (s_mblk, s_t1))
    e("s_lshl_b32 s%d, s%d, 8" % (s_t0, s_mblk))
    e("s_lshl_b32 s%d, s%d, 6" % (s_t1, s_w))
    e("s_add_u32 s%d, s%d, s%d" % (s_t0, s_t0, s_t1))
    e("s_mul_i32 s%d, s%d, 1152" % (s_xo, s_t0))
    e("s_mul_i32 s%d, s%d, 9216" % (s_oo, s_t0))
    e("s_mul_i32 s%d, s%d, 288" % (s_t1, s_nblk))
    e("s_add_u32 s%d, s%d, s%d" % (s_oo, s_oo, s_t1))
    for mt in range(1, 4):
        e("s_add_u32 s%d, s%d, %d" % (s_xo + mt, s_xo, mt * 16 * 1152))
        e("s_add_u32 s%d, s%d, %d" % (s_oo + mt, s_oo, mt * 16 * 9216))
    e("s_mul_i32 s%d, s%d, 576" % (s_q0, s_nblk))
    e("s_mov_b32 s%d, 0x4b800000" % s_c24)
    lane = v_tmp + 1; t2 = v_tmp + 2; t3 = v_tmp + 3; kb = v_tmp + 4; nb = v_tmp + 5; t6 = v_tmp + 6; t7 = v_tmp + 7
    e("v_and_b32 v%d, 63, v0" % lane)
    e("v_lshrrev_b32 v%d, 4, v0" % kb)
    e("v_and_b32 v%d, 15, v0" % nb)
    e("v_lshrrev_b32 v%d, 4, v%d" % (t2, lane))
    e("v_mul_u32_u24 v%d, 1152, v%d" % (v_x, nb))
    e("v_lshl_add_u32 v%d, v%d, 4, v%d" % (v_x, t2, v_x))
    e("s_waitcnt lgkmcnt(0)")
    def srd(sd, sp, nbytes):
        e("s_mov_b32 s%d, s%d" % (sd, sp))
        e("s_and_b32 s%d, s%d, 0xffff" % (sd + 1, sp + 1))
        e("s_mov_b32 s%d, %d" % (sd + 2, nbytes))
        e("s_mov_b32 s%d, 0x00020000" % (sd + 3))
    srd(S_X, 4, M * K * 2)
    srd(S_Q, 6, K * N * 4)
    srd(S_SC, 8, NG * N * 2)
    srd(S_Z, 10, NG * N * 2)
    srd(S_O, 12, M * N * 2)
    mul72, sh72 = magic(72, 255)
    gq = t3; cp = t6
    e("v_mul_u32_u24 v%d, %d, v0" % (gq, mul72))
    e("v_lshrrev_b32 v%d, %d, v%d" % (gq, sh72, gq))
    e("v_mul_u32_u24 v%d, 72, v%d" % (cp, gq))
    e("v_sub_u32 v%d, v0, v%d" % (cp, cp))
    e("v_mul_u32_u24 v%d, 9216, v%d" % (t7, gq))
    e("v_lshl_add_u32 v%d, v%d, 2, v%d" % (t7, cp, t7))
    pa = v_acc[0]
    e("s_add_u32 s%d, s%d, %d" % (s_t2, s_t1, 3 * 9216))
    e("s_add_u32 s%d, s%d, %d" % (s_t3, s_t1, 6 * 9216))
    for i, so in enumerate((s_t1, s_t2, s_t3)):
        g.vm("buffer_load_dword v%d, v%d, s[%d:%d], s%d offen" % (pa + i, t7, S_SC, S_SC + 3, so), "sz")
        g.vm("buffer_load_dword v%d, v%d, s[%d:%d], s%d offen" % (pa + 3 + i, t7, S_Z, S_Z + 3, so), "sz")
    v_tw = pa + 6
    e("v_mul_u32_u24 v%d, 1152, v%d" % (v_tw, gq))
    e("v_lshl_add_u32 v%d, v%d, 4, v%d" % (v_tw, cp, v_tw))
    for T in Ts:
        b = v_q[T]
        e("v_mul_u32_u24 v%d, %d, v%d" % (b, 4 * 18432, kb))
        e("v_mul_u32_u24 v%d, %d, v%d" % (t7, 4 * T, nb))
        e("v_add_u32 v%d, v%d, v%d" % (b, b, t7))
        for r in range(1, 4):
            e("v_add_u32 v%d, %d, v%d" % (b + r, r * 18432, b))

    def load_q(j):
        p, gg = chunks[j]
        T = phases[p]
        slot = j % NS
        out = []
        out.append(("s", "s_add_u32 s%d, s%d, %d" % (s_qs, s_q0, gg * 64 * 18432 + pbase[p] * 4)))
        for r in range(4):
            base = v_st + slot * 4 * RS + r * RS
            rem = T; off = 0
            while rem > 0:
                w = min(rem, 4)
                if w == 1:
                    ins = "buffer_load_dword v%d, v%d, s[%d:%d], s%d offen" % (base + off, v_q[T] + r, S_Q, S_Q + 3, s_qs)
                else:
                    ins = "buffer_load_dwordx%d v[%d:%d], v%d, s[%d:%d], s%d offen" % (w, base + off, base + off + w - 1, v_q[T] + r, S_Q, S_Q + 3, s_qs)
                if off: ins += " offset:%d" % (off * 4)
                out.append(("vm", ins, "q%d" % j))
                rem -= w; off += w
        return out
    def xreg(xi):
        if xi < 64: return "a[%d:%d]" % (4 * xi, 4 * xi + 3)
        b = v_xo + 4 * (xi - 64)
        return "v[%d:%d]" % (b, b + 3)
    def load_x(gg):
        out = []
        for s in range(2):
            for mt in range(4):
                xi = (2 * gg + s) * 4 + mt
                out.append(("vm", "buffer_load_dwordx4 %s, v%d, s[%d:%d], s%d offen offset:%d" % (xreg(xi), v_x, S_X, S_X + 3, s_xo + mt, (2 * gg + s) * 64), "x%d" % gg))
        return out
    def emit_items(items):
        for it in items:
            emit_item(it)
    def emit_item(it):
        k = it[0]
        if k == "s" or k == "v":
            if len(it) > 2: g.need(*it[2])
            e(it[1])
        elif k == "vm":
            if len(it) > 3: g.need(*it[3])
            g.vm(it[1], it[2])
        elif k == "ds":
            if len(it) > 3: g.need(*it[3])
            g.ds(it[1], it[2])
        else:
            raise Exception(k)

    LEADQ = NS - 1
    emit_items(load_q(0)); emit_items(load_q(1))
    nq_issued = 2
    nx_issued = 0
    for i in range(LEADX):
        emit_items(load_x(nx_issued)); nx_issued += 1
        if nq_issued < NS:
            emit_items(load_q(nq_issued)); nq_issued += 1
    while nq_issued < NS:
        emit_items(load_q(nq_issued)); nq_issued += 1

    e("v_lshrrev_b32 v%d, 1, v%d" % (t7, nb))
    e("v_xor_b32 v%d, v%d, v%d" % (t7, t2, t7))
    e("v_lshlrev_b32 v%d, 4, v%d" % (t7, t7))
    e("v_lshl_add_u32 v%d, v%d, 7, v%d" % (v_r0, nb, t7))
    e("v_xor_b32 v%d, 64, v%d" % (v_r1, v_r0))
    for T in Ts:
        e("v_mul_u32_u24 v%d, %d, v%d" % (v_s[T], 8 * T, nb))
        e("v_mul_u32_u24 v%d, 9216, v%d" % (v_o[T], nb))
        e("v_mul_u32_u24 v%d, %d, v%d" % (t7, 8 * T, t2))
        e("v_add_u32 v%d, v%d, v%d" % (v_o[T], v_o[T], t7))
        m4, s4 = magic(4 * T, 16 * T)
        ca = pa + 8; aa = pa + 9; rm = pa + 10; rho = pa + 11; sw = pa + 12
        for ee in range(T):
            e("v_mad_u32_u24 v%d, v%d, %d, %d" % (ca, nb, T, ee) if T <= 64 else "")
            e("v_mul_u32_u24 v%d, %d, v%d" % (aa, m4, ca))
            e("v_lshrrev_b32 v%d, %d, v%d" % (aa, s4, aa))
            e("v_mul_u32_u24 v%d, %d, v%d" % (rm, 4 * T, aa))
            e("v_sub_u32 v%d, v%d, v%d" % (rm, ca, rm))
            e("v_lshrrev_b32 v%d, 2, v%d" % (rho, rm))
            e("v_lshlrev_b32 v%d, 4, v%d" % (rho, rho))
            e("v_lshl_add_u32 v%d, v%d, 2, v%d" % (rho, aa, rho))
            e("v_and_b32 v%d, 3, v%d" % (rm, rm))
            e("v_add_u32 v%d, v%d, v%d" % (rho, rho, rm))
            e("v_bfe_u32 v%d, v%d, 1, 3" % (sw, rho))
            e("v_lshrrev_b32 v%d, 1, v%d" % (rm, kb))
            e("v_xor_b32 v%d, v%d, v%d" % (sw, sw, rm))
            e("v_lshlrev_b32 v%d, 4, v%d" % (sw, sw))
            e("v_lshl_add_u32 v%d, v%d, 7, v%d" % (sw, rho, sw))
            e("v_and_b32 v%d, 1, v%d" % (rm, kb))
            e("v_lshl_add_u32 v%d, v%d, 3, v%d" % (v_w[T] + ee, rm, sw))
    g.need(("sz",))
    e("v_cmp_gt_u32 vcc, 216, v0")
    e("s_and_saveexec_b64 s[%d:%d], vcc" % (s_sv, s_sv + 1))
    e("s_mov_b64 s[%d:%d], 0" % (s_bad, s_bad + 1))
    sl, sh_, zl, zh = pa + 16, pa + 17, pa + 18, pa + 19
    o4 = pa + 20
    tt = pa + 24
    for i in range(3):
        e("v_lshlrev_b32 v%d, 16, v%d" % (sl, pa + i))
        e("v_and_b32 v%d, 0xffff0000, v%d" % (sh_, pa + i))
        e("v_lshlrev_b32 v%d, 16, v%d" % (zl, pa + 3 + i))
        e("v_and_b32 v%d, 0xffff0000, v%d" % (zh, pa + 3 + i))
        e("v_mul_f32 v%d, s%d, v%d" % (o4, s_c24, sl))
        e("v_mul_f32_e64 v%d, -v%d, v%d" % (o4 + 1, zl, sl))
        e("v_mul_f32 v%d, s%d, v%d" % (o4 + 2, s_c24, sh_))
        e("v_mul_f32_e64 v%d, -v%d, v%d" % (o4 + 3, zh, sh_))
        g.ds("ds_write_b128 v%d, v[%d:%d] offset:%d" % (v_tw, o4, o4 + 3, TABF + i * 3 * 1152), "tab")
        o5 = pa + 28
        e("v_mov_b32 v%d, v%d" % (o5, sl))
        e("v_xor_b32 v%d, 0x80000000, v%d" % (o5 + 1, zl))
        e("v_mov_b32 v%d, v%d" % (o5 + 2, sh_))
        e("v_xor_b32 v%d, 0x80000000, v%d" % (o5 + 3, zh))
        g.ds("ds_write_b128 v%d, v[%d:%d] offset:%d" % (v_tw, o5, o5 + 3, TABG + i * 3 * 1152), "tab")
        for (sv, zv) in ((sl, zl), (sh_, zh)):
            e("v_rndne_f32 v%d, v%d" % (tt, zv))
            e("v_cmp_neq_f32 vcc, v%d, v%d" % (tt, zv))
            e("s_or_b64 s[%d:%d], s[%d:%d], vcc" % (s_bad, s_bad + 1, s_bad, s_bad + 1))
            e("v_and_b32 v%d, 0x7fffffff, v%d" % (tt, zv))
            e("v_cmp_lt_u32 vcc, 0x43000000, v%d" % tt)
            e("s_or_b64 s[%d:%d], s[%d:%d], vcc" % (s_bad, s_bad + 1, s_bad, s_bad + 1))
            e("v_and_b32 v%d, 0x7fffffff, v%d" % (tt, sv))
            e("v_cmp_ne_u32 s[%d:%d], 0, v%d" % (s_t2, s_t3, tt))
            e("v_subrev_u32 v%d, %d, v%d" % (tt, 27 << 23, tt))
            e("v_cmp_le_u32 vcc, %d, v%d" % (200 << 23, tt))
            e("s_and_b64 vcc, vcc, s[%d:%d]" % (s_t2, s_t3))
            e("s_or_b64 s[%d:%d], s[%d:%d], vcc" % (s_bad, s_bad + 1, s_bad, s_bad + 1))
    e("s_mov_b64 exec, s[%d:%d]" % (s_sv, s_sv + 1))
    e("s_cmp_lg_u64 s[%d:%d], 0" % (s_bad, s_bad + 1))
    e("s_cselect_b32 s%d, 1, 0" % s_t2)
    e("s_lshl_b32 s%d, s%d, 2" % (s_t3, s_w))
    e("v_mov_b32 v%d, s%d" % (tt, s_t2))
    e("v_mov_b32 v%d, s%d" % (tt + 1, s_t3))
    g.ds("ds_write_b32 v%d, v%d offset:%d" % (tt + 1, tt, FLAGS), "tab")
    g.need((), ("tab",))
    e("s_barrier")
    e("v_mov_b32 v%d, 0" % tt)
    g.ds("ds_read_b128 v[%d:%d], v%d offset:%d" % (o4, o4 + 3, tt, FLAGS), "flag")
    g.need((), ("flag",))
    e("v_or_b32 v%d, v%d, v%d" % (o4, o4, o4 + 1))
    e("v_or3_b32 v%d, v%d, v%d, v%d" % (o4, o4, o4 + 2, o4 + 3))
    e("s_nop 0")
    e("v_readfirstlane_b32 s%d, v%d" % (s_t2, o4))
    e("s_cmp_lg_u32 s%d, 0" % s_t2)
    e("s_cbranch_scc1 L_generic")

    saved = (list(g.vmq), list(g.lgq), nq_issued, nx_issued)

    def body(generic):
        nonlocal nq_issued, nx_issued
        g.vmq, g.lgq = list(saved[0]), list(saved[1])
        nq_issued, nx_issued = saved[2], saved[3]
        TAB = TABG if generic else TABF
        def scale_reads(j):
            p, gg = chunks[j]; T = phases[p]
            b = v_sc + (j % 2) * 2 * Tmax
            out = []
            ee = 0
            off0 = TAB + gg * 1152 + pbase[p] * 8
            while ee < T:
                if T % 2 == 0:
                    out.append(("ds", "ds_read_b128 v[%d:%d], v%d offset:%d" % (b + 2 * ee, b + 2 * ee + 3, v_s[T], off0 + ee * 8), "sc%d" % j))
                    ee += 2
                else:
                    out.append(("ds", "ds_read_b64 v[%d:%d], v%d offset:%d" % (b + 2 * ee, b + 2 * ee + 1, v_s[T], off0 + ee * 8), "sc%d" % j))
                    ee += 1
            return out
        def dequant(j):
            p, gg = chunks[j]; T = phases[p]
            slot = j % NS
            b = v_sc + (j % 2) * 2 * Tmax
            out = []
            first = True
            for ee in range(T):
                f = v_tmp + (ee % 2) * 4
                d = v_d + (ee % 2) * 2
                c1 = b + 2 * ee; c0 = b + 2 * ee + 1
                for r in range(4):
                    q = v_st + slot * 4 * RS + r * RS + ee
                    dep = ((("q%d" % j,), ("sc%d" % j,)),) if first else ()
                    first = False
                    if not generic:
                        out.append(("v", "v_fma_mix_f32 v%d, v%d, v%d, v%d op_sel_hi:[1,0,0]" % (f + r, q, c1, c0)) + dep)
                    else:
                        out.append(("v", "v_cvt_f32_i32 v%d, v%d" % (f + r, q)) + dep)
                        out.append(("v", "v_cvt_pk_bf16_f32 v%d, 0, v%d" % (f + r, f + r)))
                        out.append(("v", "v_add_f32 v%d, v%d, v%d" % (f + r, f + r, c0)))
                        out.append(("v", "v_cvt_pk_bf16_f32 v%d, 0, v%d" % (f + r, f + r)))
                        out.append(("v", "v_mul_f32 v%d, v%d, v%d" % (f + r, f + r, c1)))
                out.append(("v", "v_cvt_pk_bf16_f32 v%d, v%d, v%d" % (d, f, f + 1)))
                out.append(("v", "v_cvt_pk_bf16_f32 v%d, v%d, v%d" % (d + 1, f + 2, f + 3)))
                out.append(("ds", "ds_write_b64 v%d, v[%d:%d] offset:%d" % (v_w[T] + ee, d, d + 1, (j % RING) * SLOT), "w%d" % j))
            return out
        def epilogue(p):
            T = phases[p]
            ab = v_acc[p % nbanks]
            out = []
            for mt in range(4):
                base = ab + mt * T * 4
                for t in range(T):
                    out.append(("v", "v_cvt_pk_bf16_f32 v%d, v%d, v%d" % (base + 2 * t, base + 4 * t, base + 4 * t + 1)))
                    out.append(("v", "v_cvt_pk_bf16_f32 v%d, v%d, v%d" % (base + 2 * t + 1, base + 4 * t + 2, base + 4 * t + 3)))
                out.append(("s", "s_add_u32 s%d, s%d, %d" % (s_os, s_oo + mt, pbase[p] * 2)))
                rem = 2 * T; off = 0
                while rem > 0:
                    w = min(rem, 4)
                    if rem == 6: w = 4
                    ins = "buffer_store_dwordx%d v[%d:%d], v%d, s[%d:%d], s%d offen" % (w, base + off, base + off + w - 1, v_o[T], S_O, S_O + 3, s_os)
                    if off: ins += " offset:%d" % (off * 4)
                    out.append(("vm", ins, "st"))
                    rem -= w; off += w
            return out
        frags = []
        for j, (p, gg) in enumerate(chunks):
            for s in range(2):
                for t in range(phases[p]):
                    frags.append((j, s, t))
        def frag_read(fi):
            j, s, t = frags[fi]
            b = v_fr + (fi % 4) * 4
            return ("ds", "ds_read_b128 v[%d:%d], v%d offset:%d" % (b, b + 3, v_r1 if s else v_r0, (j % RING) * SLOT + t * 2048), "f%d" % fi)
        emit_items(scale_reads(0)); emit_items(scale_reads(1))
        emit_items(dequant(0))
        if nq_issued < NCH:
            emit_items(load_q(nq_issued)); nq_issued += 1
        emit_items(dequant(1))
        g.need((), ("w0", "w1"))
        e("s_barrier")
        for fi in range(3):
            emit_item(frag_read(fi))
        fi = 0
        pend_epi = []
        for j, (p, gg) in enumerate(chunks):
            T = phases[p]
            ab = v_acc[p % nbanks]
            fill = []
            if j + 2 < NCH:
                fill += scale_reads(j + 2)
            if nq_issued < NCH and nq_issued <= j + 1 + NS:
                fill += load_q(nq_issued); nq_issued += 1
            if nx_issued < NG:
                fill += load_x(nx_issued); nx_issued += 1
            if j + 2 < NCH:
                fill += dequant(j + 2)
            fill += pend_epi; pend_epi = []
            nm = 8 * T
            per = FPG
            k = 0
            mi = 0
            for s in range(2):
                for t in range(T):
                    fb = v_fr + (fi % 4) * 4
                    for mt in range(4):
                        xi = (2 * gg + s) * 4 + mt
                        acc = ab + (mt * T + t) * 4
                        g.need(("x%d" % gg,), ("f%d" % fi,))
                        csrc = "0" if (gg == 0 and s == 0) else "v[%d:%d]" % (acc, acc + 3)
                        e("v_mfma_f32_16x16x32_bf16 v[%d:%d], v[%d:%d], %s, %s" % (acc, acc + 3, fb, fb + 3, xreg(xi), csrc))
                        mi += 1
                        cnt = 0
                        if mt == 0 and fi + 3 < len(frags):
                            emit_item(frag_read(fi + 3)); cnt += 1
                        target = (len(fill) * mi + nm - 3) // max(nm - 2, 1)
                        while k < len(fill) and (k < target) and cnt < per + 2:
                            emit_item(fill[k]); k += 1; cnt += 1
                    fi += 1
            while k < len(fill):
                emit_item(fill[k]); k += 1
            if gg == NG - 1:
                pend_epi = epilogue(p)
            if j + 2 < NCH:
                g.need((), ("w%d" % (j + 2),))
            if j + 1 < NCH:
                e("s_barrier")
        e("s_nop 7")
        e("s_nop 1")
        emit_items(pend_epi)
        e("s_endpgm")

    body(False)
    g.label("L_generic")
    body(True)
    g.label("L_end")
    e("s_endpgm")
    tail = []
    tail.append('.section .rodata,"a"')
    tail.append(".p2align 6")
    tail.append(".amdhsa_kernel %s" % KNAME)
    tail.append("  .amdhsa_next_free_vgpr 512")
    tail.append("  .amdhsa_next_free_sgpr 102")
    tail.append("  .amdhsa_accum_offset 256")
    tail.append("  .amdhsa_group_segment_fixed_size 0")
    tail.append("  .amdhsa_kernarg_size 56")
    tail.append("  .amdhsa_user_sgpr_count 2")
    tail.append("  .amdhsa_user_sgpr_kernarg_segment_ptr 1")
    tail.append("  .amdhsa_system_sgpr_workgroup_id_x 1")
    tail.append("  .amdhsa_float_denorm_mode_32 3")
    tail.append("  .amdhsa_float_denorm_mode_16_64 3")
    tail.append(".end_amdhsa_kernel")
    return "\n".join(hdr + L + tail) + "\n", NVG, LDS_BYTES

if __name__ == "__main__":
    ap = argparse.ArgumentParser()
    ap.add_argument("--phases", default="3,3,3")
    ap.add_argument("--ns", type=int, default=4)
    ap.add_argument("--leadx", type=int, default=3)
    ap.add_argument("--fpg", type=int, default=2)
    ap.add_argument("-o", default="standalone__weight_only_int_quip_2__prompt.s")
    a = ap.parse_args()
    cfg = dict(phases=[int(x) for x in a.phases.split(",")], ns=a.ns, leadx=a.leadx, fpg=a.fpg)
    s, nvg, lds = build(cfg)
    open(a.o, "w").write(s)
    print("VGPRs used", nvg, "LDS", lds, "lines", s.count("\n"))
```

```python
import sys, argparse

M, K, N = 2048, 576, 4608
NG = 9
KNAME = "standalone__weight_only_int_quip_2__prompt_kernel"

class Gen:
    def __init__(self):
        self.L = []
        self.vmq = []
        self.lgq = []
    def e(self, s): self.L.append("    " + s)
    def label(self, s): self.L.append(s + ":")
    def vm(self, s, tag):
        self.e(s); self.vmq.append(tag)
        assert len(self.vmq) <= 62, "too many VMEM outstanding: %d" % len(self.vmq)
    def ds(self, s, tag):
        self.e(s); self.lgq.append(tag)
    def need(self, vmtags=(), lgtags=()):
        w = []
        nv = None
        for t in vmtags:
            idx = [i for i, x in enumerate(self.vmq) if x == t]
            if idx:
                n = len(self.vmq) - 1 - idx[-1]
                nv = n if nv is None else min(nv, n)
        if nv is not None:
            self.vmq = self.vmq[len(self.vmq) - nv:] if nv else []
            w.append("vmcnt(%d)" % nv)
        nl = None
        for t in lgtags:
            idx = [i for i, x in enumerate(self.lgq) if x == t]
            if idx:
                n = len(self.lgq) - 1 - idx[-1]
                nl = n if nl is None else min(nl, n)
        if nl is not None:
            nl = min(nl, 15)
            self.lgq = self.lgq[len(self.lgq) - nl:] if nl else []
            w.append("lgkmcnt(%d)" % nl)
        if w: self.e("s_waitcnt " + " ".join(w))

def magic(d, maxv):
    for sh in range(8, 24):
        mul = ((1 << sh) + d - 1) // d
        if all(((v * mul) >> sh) == v // d for v in range(maxv + 1)):
            assert maxv * mul < (1 << 32) and mul < (1 << 24)
            return mul, sh
    raise Exception("no magic")

def build(cfg):
    NS = cfg["ns"]; XR = cfg["xr"]; FR = cfg["fr"]; FPG = cfg["fpg"]; BARF = cfg["barf"]
    T = 9
    SLOT = T * 2048
    WB = 0
    TAB = 2 * SLOT
    FLAGS = TAB + NG * 144 * 8
    XB = FLAGS + 64
    XB = (XB + 1023) // 1024 * 1024
    LDS_BYTES = XB + 4 * XR * 8192
    assert LDS_BYTES <= 163840, LDS_BYTES
    nv = [0]
    def valloc(n, align=1):
        b = (nv[0] + align - 1) // align * align
        nv[0] = b + n
        return b
    valloc(1)
    v_qa = valloc(1); v_qb = valloc(1); v_wa = valloc(1); v_wb = valloc(1); v_sa = valloc(1); v_sb = valloc(1)
    v_r = [valloc(1) for _ in range(4)]; v_xr = [valloc(1), valloc(1)]; v_xd = [valloc(1), valloc(1)]
    v_oa = valloc(1); v_ob = valloc(1)
    v_tmp = valloc(16, 4)
    v_sc = valloc(12, 4)
    v_st = valloc(NS * 36, 4)
    NACCV = cfg["naccv"]
    v_acc = valloc(4 * NACCV, 4)
    NVG = nv[0]
    assert NVG <= 256, "VGPR overflow %d" % NVG
    a_x = 0
    a_fr = 32
    a_acc = 32 + 4 * FR
    quads = [(mt, t) for t in range(8) for mt in range(4)] + [(mt, 8) for mt in range(4)]
    accloc = {}
    for i, qd in enumerate(quads):
        if i < NACCV: accloc[qd] = ("v", v_acc + 4 * i)
        else: accloc[qd] = ("a", a_acc + 4 * (i - NACCV))
    assert a_acc + 4 * (36 - NACCV) <= 256

    g = Gen(); e = g.e
    hdr = ["; W4 dequant GEMM v2, generated by gen/gen3.py cfg=%s" % (cfg,),
           "; @launch grid=(256,1,1) block=(256,1,1) lds=%d" % LDS_BYTES,
           '.amdgcn_target "amdgcn-amd-amdhsa--gfx950"', ".text", ".globl %s" % KNAME, ".p2align 8",
           ".type %s,@function" % KNAME, "%s:" % KNAME]
    S_X, S_Q, S_SC, S_Z, S_O = 16, 20, 24, 28, 32
    s_w = 36; s_nblk = 37; s_mblk = 38; s_xw = 39
    s_xo = 40
    s_oo = 48
    s_q0 = 49
    s_t0, s_t1, s_t2, s_t3 = 50, 51, 52, 53
    s_qs = 54
    s_os = 58
    s_bad = 60; s_sv = 62; s_c24 = 64
    STAMP0 = 66
    stc = [1]
    def pst():
        if cfg.get("stamp") == 3:
            e("s_memtime s[%d:%d]" % (STAMP0 + 2 * stc[0], STAMP0 + 1 + 2 * stc[0])); stc[0] += 1
    if cfg.get("stamp") in (1, 3): e("s_memtime s[%d:%d]" % (STAMP0, STAMP0 + 1))
    e("s_cmp_ge_u32 s2, 256")
    e("s_cbranch_scc1 L_end")
    e("s_load_dwordx4 s[4:7], s[0:1], 0")
    e("s_load_dwordx4 s[8:11], s[0:1], 16")
    e("s_load_dwordx2 s[12:13], s[0:1], 32")
    e("v_lshrrev_b32 v%d, 6, v0" % v_tmp)
    e("s_and_b32 s%d, s2, 7" % s_t0)
    e("s_lshr_b32 s%d, s2, 3" % s_t1)
    e("v_readfirstlane_b32 s%d, v%d" % (s_w, v_tmp))
    e("s_and_b32 s%d, s%d, 3" % (s_t2, s_t1))
    e("s_lshl_b32 s%d, s%d, 2" % (s_nblk, s_t0))
    e("s_add_u32 s%d, s%d, s%d" % (s_nblk, s_nblk, s_t2))
    e("s_lshr_b32 s%d, s%d, 2" % (s_mblk, s_t1))
    e("s_lshl_b32 s%d, s%d, 8" % (s_t0, s_mblk))
    e("s_lshl_b32 s%d, s%d, 6" % (s_t1, s_w))
    e("s_add_u32 s%d, s%d, s%d" % (s_t0, s_t0, s_t1))
    e("s_mul_i32 s%d, s%d, 1152" % (s_xo, s_t0))
    e("s_mul_i32 s%d, s%d, 9216" % (s_oo, s_t0))
    e("s_mul_i32 s%d, s%d, 288" % (s_t1, s_nblk))
    e("s_add_u32 s%d, s%d, s%d" % (s_oo, s_oo, s_t1))
    for rb in range(1, 8):
        e("s_add_u32 s%d, s%d, %d" % (s_xo + rb, s_xo, rb * 8 * 1152))
    e("s_mul_i32 s%d, s%d, 576" % (s_q0, s_nblk))
    e("s_mul_i32 s%d, s%d, %d" % (s_xw, s_w, XR * 8192))
    e("s_add_u32 s%d, s%d, %d" % (s_xw, s_xw, XB))
    e("s_mov_b32 s%d, 0x4b800000" % s_c24)
    lane = v_tmp + 1; kg = v_tmp + 2; t3 = v_tmp + 3; kb = v_tmp + 4; nb = v_tmp + 5; t6 = v_tmp + 6; t7 = v_tmp + 7
    e("v_and_b32 v%d, 63, v0" % lane)
    e("v_lshrrev_b32 v%d, 4, v0" % kb)
    e("v_and_b32 v%d, 15, v0" % nb)
    e("v_lshrrev_b32 v%d, 4, v%d" % (kg, lane))
    e("v_lshrrev_b32 v%d, 3, v%d" % (t7, lane))
    e("v_mul_u32_u24 v%d, 1152, v%d" % (v_xd[0], t7))
    e("v_and_b32 v%d, 7, v%d" % (t7, lane))
    e("v_xor_b32 v%d, v%d, v%d" % (t7, t7, kg))
    e("v_lshl_add_u32 v%d, v%d, 4, v%d" % (v_xd[0], t7, v_xd[0]))
    e("v_xor_b32 v%d, 64, v%d" % (v_xd[1], v_xd[0]))
    e("v_mul_u32_u24 v%d, %d, v%d" % (v_qb, 4 * 18432, kb))
    e("v_lshl_add_u32 v%d, v%d, 2, v%d" % (v_qb, nb, v_qb))
    e("v_add_u32 v%d, 512, v%d" % (v_qb, v_qb))
    k8 = v_tmp + 8; nq_ = v_tmp + 9
    e("v_lshrrev_b32 v%d, 5, v0" % k8)
    e("v_and_b32 v%d, 31, v0" % nq_)
    e("v_mul_u32_u24 v%d, %d, v%d" % (v_qa, 8 * 18432, k8))
    e("v_lshl_add_u32 v%d, v%d, 4, v%d" % (v_qa, nq_, v_qa))
    e("s_waitcnt lgkmcnt(0)")
    pst()
    def srd(sd, sp, nbytes):
        e("s_mov_b32 s%d, s%d" % (sd, sp))
        e("s_and_b32 s%d, s%d, 0xffff" % (sd + 1, sp + 1))
        e("s_mov_b32 s%d, %d" % (sd + 2, nbytes))
        e("s_mov_b32 s%d, 0x00020000" % (sd + 3))
    srd(S_X, 4, M * K * 2); srd(S_Q, 6, K * N * 4); srd(S_SC, 8, NG * N * 2); srd(S_Z, 10, NG * N * 2); srd(S_O, 12, M * N * 2)
    mul72, sh72 = magic(72, 255)
    gq = t3; cp = t6
    e("v_mul_u32_u24 v%d, %d, v0" % (gq, mul72))
    e("v_lshrrev_b32 v%d, %d, v%d" % (gq, sh72, gq))
    e("v_mul_u32_u24 v%d, 72, v%d" % (cp, gq))
    e("v_sub_u32 v%d, v0, v%d" % (cp, cp))
    e("v_mul_u32_u24 v%d, 9216, v%d" % (t7, gq))
    e("v_lshl_add_u32 v%d, v%d, 2, v%d" % (t7, cp, t7))
    pa = v_acc
    assert NACCV >= 8
    e("s_add_u32 s%d, s%d, %d" % (s_t2, s_t1, 3 * 9216))
    e("s_add_u32 s%d, s%d, %d" % (s_t3, s_t1, 6 * 9216))
    for i, so in enumerate((s_t1, s_t2, s_t3)):
        g.vm("buffer_load_dword v%d, v%d, s[%d:%d], s%d offen" % (pa + i, t7, S_SC, S_SC + 3, so), "sz")
        g.vm("buffer_load_dword v%d, v%d, s[%d:%d], s%d offen" % (pa + 3 + i, t7, S_Z, S_Z + 3, so), "sz")
    v_tw = pa + 6
    e("v_mul_u32_u24 v%d, 1152, v%d" % (v_tw, gq))
    e("v_lshl_add_u32 v%d, v%d, 4, v%d" % (v_tw, cp, v_tw))

    dis = cfg.get("dis", "")
    def emit_item(it):
        k = it[0]
        if k == "vm" and it[2].startswith("x") and "x" in dis: return
        if k == "vm" and it[2].startswith("q") and "q" in dis: return
        if k == "vm" and it[2].startswith("st") and "s" in dis: return
        if k == "v" and "v" in dis and ("fma_mix" in it[1] or "cvt_pk" in it[1]): return
        if k == "ds" and "w" in dis and it[2].startswith("w"): return
        if k in ("s", "v"):
            if len(it) > 2: g.need(*it[2])
            e(it[1])
        elif k == "vm":
            if len(it) > 3: g.need(*it[3])
            g.vm(it[1], it[2])
        elif k == "ds":
            if len(it) > 3: g.need(*it[3])
            g.ds(it[1], it[2])
        else: raise Exception(k)
    def emit_items(items):
        for it in items: emit_item(it)

    def qreg(slot, r, ee):
        b = v_st + slot * 36
        return b + r * 4 + ee if ee < 4 else b + 32 + r
    def load_q_parts(j):
        slot = j % NS
        parts = {"a": [], "b": []}
        for r in range(8):
            b = qreg(slot, r, 0)
            parts["a"].append(("s", "s_add_u32 s%d, s%d, %d" % (s_qs, s_q0, (j * 64 + r) * 18432)))
            parts["a"].append(("vm", "buffer_load_dwordx4 v[%d:%d], v%d, s[%d:%d], s%d offen" % (b, b + 3, v_qa, S_Q, S_Q + 3, s_qs), "q%d" % j))
        for r in range(4):
            parts["b"].append(("s", "s_add_u32 s%d, s%d, %d" % (s_qs + 1, s_q0, (j * 64 + r) * 18432)))
            parts["b"].append(("vm", "buffer_load_dword v%d, v%d, s[%d:%d], s%d offen" % (qreg(slot, r, 4), v_qb, S_Q, S_Q + 3, s_qs + 1), "q%d" % j))
        return parts
    def load_q(j):
        p_ = load_q_parts(j)
        return p_["a"] + p_["b"]
    def dma_x(gg):
        out = []
        for rb in range(8):
            c = (gg % XR) * 8192 + rb * 1024 - gg * 128
            if c >= 0: out.append(("s", "s_add_u32 m0, s%d, %d" % (s_xw, c)))
            else: out.append(("s", "s_sub_u32 m0, s%d, %d" % (s_xw, -c)))
            out.append(("nopvm", "buffer_load_dwordx4 v%d, s[%d:%d], s%d offen offset:%d lds" % (v_xd[rb & 1], S_X, S_X + 3, s_xo + rb, gg * 128), "x%d" % gg))
        res = []
        for it in out:
            if it[0] == "nopvm":
                res.append(("s", "s_nop 0"))
                res.append(("vm", it[1], it[2]))
            else: res.append(it)
        return res

    emit_items(load_q(0))
    emit_items(dma_x(0))
    nq = 1; nx = 1
    while nq < NS or nx < XR - 1:
        if nq < NS: emit_items(load_q(nq)); nq += 1
        if nx < XR - 1: emit_items(dma_x(nx)); nx += 1

    pst()
    e("v_lshrrev_b32 v%d, 1, v%d" % (t7, nb))
    e("v_xor_b32 v%d, v%d, v%d" % (t7, kg, t7))
    e("v_lshlrev_b32 v%d, 4, v%d" % (t7, t7))
    e("v_lshl_add_u32 v%d, v%d, 7, v%d" % (v_xr[0], nb, t7))
    e("v_add_u32 v%d, s%d, v%d" % (v_xr[0], s_xw, v_xr[0]))
    e("v_xor_b32 v%d, 64, v%d" % (v_xr[1], v_xr[0]))
    hh = v_tmp + 10; ii = v_tmp + 11; t12 = v_tmp + 12
    e("v_lshrrev_b32 v%d, 1, v%d" % (hh, nb))
    e("v_and_b32 v%d, 1, v%d" % (t7, nb))
    e("v_lshlrev_b32 v%d, 2, v%d" % (t7, t7))
    e("v_xor_b32 v%d, v%d, v%d" % (hh, hh, t7))
    e("v_xor_b32 v%d, v%d, v%d" % (t7, kg, hh))
    e("v_lshlrev_b32 v%d, 4, v%d" % (t7, t7))
    e("v_lshl_add_u32 v%d, v%d, 7, v%d" % (v_r[0], nb, t7))
    for xx in range(1, 4):
        e("v_xor_b32 v%d, %d, v%d" % (v_r[xx], xx * 32, v_r[0]))
    e("v_lshrrev_b32 v%d, 1, v%d" % (t7, kb))
    e("v_xor_b32 v%d, v%d, v%d" % (t7, t7, hh))
    e("v_lshlrev_b32 v%d, 4, v%d" % (t7, t7))
    e("v_lshl_add_u32 v%d, v%d, 7, v%d" % (v_wb, nb, t7))
    e("v_and_b32 v%d, 1, v%d" % (t7, kb))
    e("v_lshl_add_u32 v%d, v%d, 3, v%d" % (v_wb, t7, v_wb))
    e("v_lshrrev_b32 v%d, 1, v%d" % (ii, nq_))
    e("v_lshrrev_b32 v%d, 1, v%d" % (hh, ii))
    e("v_and_b32 v%d, 1, v%d" % (t7, ii))
    e("v_lshlrev_b32 v%d, 2, v%d" % (t7, t7))
    e("v_xor_b32 v%d, v%d, v%d" % (hh, hh, t7))
    e("v_and_b32 v%d, 1, v%d" % (t12, nq_))
    e("v_lshlrev_b32 v%d, 1, v%d" % (t7, t12))
    e("v_xor_b32 v%d, v%d, v%d" % (hh, hh, t7))
    e("v_xor_b32 v%d, v%d, v%d" % (hh, hh, k8))
    e("v_lshlrev_b32 v%d, 4, v%d" % (hh, hh))
    e("v_lshl_add_u32 v%d, v%d, 6, v%d" % (t7, t12, ii))
    e("v_lshl_add_u32 v%d, v%d, 7, v%d" % (v_wa, t7, hh))
    e("v_lshlrev_b32 v%d, 5, v%d" % (v_sa, nq_))
    e("v_lshlrev_b32 v%d, 3, v%d" % (v_sb, nb))
    e("v_mul_u32_u24 v%d, %d, v%d" % (v_ob, 4 * 9216, kg))
    e("v_lshl_add_u32 v%d, v%d, 4, v%d" % (v_oa, nb, v_ob))
    e("v_lshl_add_u32 v%d, v%d, 1, v%d" % (v_ob, nb, v_ob))
    g.need(("sz",))
    pst()
    e("v_cmp_gt_u32 vcc, 216, v0")
    e("s_and_saveexec_b64 s[%d:%d], vcc" % (s_sv, s_sv + 1))
    e("s_mov_b64 s[%d:%d], 0" % (s_bad, s_bad + 1))
    sl, sh_, zl, zh = pa + 16, pa + 17, pa + 18, pa + 19
    o4 = pa + 20; tt = pa + 24
    for i in range(3):
        e("v_lshlrev_b32 v%d, 16, v%d" % (sl, pa + i))
        e("v_and_b32 v%d, 0xffff0000, v%d" % (sh_, pa + i))
        e("v_lshlrev_b32 v%d, 16, v%d" % (zl, pa + 3 + i))
        e("v_and_b32 v%d, 0xffff0000, v%d" % (zh, pa + 3 + i))
        e("v_mul_f32 v%d, s%d, v%d" % (o4, s_c24, sl))
        e("v_mul_f32_e64 v%d, -v%d, v%d" % (o4 + 1, zl, sl))
        e("v_mul_f32 v%d, s%d, v%d" % (o4 + 2, s_c24, sh_))
        e("v_mul_f32_e64 v%d, -v%d, v%d" % (o4 + 3, zh, sh_))
        g.ds("ds_write_b128 v%d, v[%d:%d] offset:%d" % (v_tw, o4, o4 + 3, TAB + i * 3 * 1152), "tab")
        for (sv, zv) in ((sl, zl), (sh_, zh)):
            e("v_rndne_f32 v%d, v%d" % (tt, zv))
            e("v_cmp_neq_f32 vcc, v%d, v%d" % (tt, zv))
            e("s_or_b64 s[%d:%d], s[%d:%d], vcc" % (s_bad, s_bad + 1, s_bad, s_bad + 1))
            e("v_and_b32 v%d, 0x7fffffff, v%d" % (tt, zv))
            e("v_cmp_lt_u32 vcc, 0x43000000, v%d" % tt)
            e("s_or_b64 s[%d:%d], s[%d:%d], vcc" % (s_bad, s_bad + 1, s_bad, s_bad + 1))
            e("v_and_b32 v%d, 0x7fffffff, v%d" % (tt, sv))
            e("v_cmp_ne_u32 s[%d:%d], 0, v%d" % (s_t2, s_t3, tt))
            e("v_subrev_u32 v%d, %d, v%d" % (tt, 27 << 23, tt))
            e("v_cmp_le_u32 vcc, %d, v%d" % (200 << 23, tt))
            e("s_and_b64 vcc, vcc, s[%d:%d]" % (s_t2, s_t3))
            e("s_or_b64 s[%d:%d], s[%d:%d], vcc" % (s_bad, s_bad + 1, s_bad, s_bad + 1))
    e("s_mov_b64 exec, s[%d:%d]" % (s_sv, s_sv + 1))
    e("s_cmp_lg_u64 s[%d:%d], 0" % (s_bad, s_bad + 1))
    e("s_cselect_b32 s%d, 1, 0" % s_t2)
    e("s_lshl_b32 s%d, s%d, 2" % (s_t3, s_w))
    e("v_mov_b32 v%d, s%d" % (tt, s_t2))
    e("v_mov_b32 v%d, s%d" % (tt + 1, s_t3))
    g.ds("ds_write_b32 v%d, v%d offset:%d" % (tt + 1, tt, FLAGS), "tab")
    g.need((), ("tab",))
    pst()
    e("s_barrier")
    pst()
    e("v_mov_b32 v%d, 0" % tt)
    g.ds("ds_read_b128 v[%d:%d], v%d offset:%d" % (o4, o4 + 3, tt, FLAGS), "flag")
    g.need((), ("flag",))
    e("v_or_b32 v%d, v%d, v%d" % (o4, o4, o4 + 1))
    e("v_or3_b32 v%d, v%d, v%d, v%d" % (o4, o4, o4 + 2, o4 + 3))
    e("s_nop 0")
    e("v_readfirstlane_b32 s%d, v%d" % (s_t2, o4))
    e("s_cmp_lg_u32 s%d, 0" % s_t2)
    e("s_cbranch_scc1 L_generic")
    saved = (list(g.vmq), list(g.lgq), nq, nx)

    def body(generic):
        nonlocal nq, nx
        g.vmq, g.lgq = list(saved[0]), list(saved[1])
        nq, nx = saved[2], saved[3]
        if generic:
            e("s_barrier")
            e("v_cmp_gt_u32 vcc, 216, v0")
            e("s_and_saveexec_b64 s[%d:%d], vcc" % (s_sv, s_sv + 1))
            for i in range(3):
                e("v_lshlrev_b32 v%d, 16, v%d" % (o4, pa + i))
                e("v_and_b32 v%d, 0xffff0000, v%d" % (o4 + 2, pa + i))
                e("v_lshlrev_b32 v%d, 16, v%d" % (o4 + 1, pa + 3 + i))
                e("v_and_b32 v%d, 0xffff0000, v%d" % (o4 + 3, pa + 3 + i))
                e("v_xor_b32 v%d, 0x80000000, v%d" % (o4 + 1, o4 + 1))
                e("v_xor_b32 v%d, 0x80000000, v%d" % (o4 + 3, o4 + 3))
                g.ds("ds_write_b128 v%d, v[%d:%d] offset:%d" % (v_tw, o4, o4 + 3, TAB + i * 3 * 1152), "tab")
                g.need((), ("tab",))
            e("s_mov_b64 exec, s[%d:%d]" % (s_sv, s_sv + 1))
            e("s_barrier")
        def scale_reads(j):
            out = []
            off0 = TAB + j * 1152
            for h in range(2):
                out.append(("ds", "ds_read_b128 v[%d:%d], v%d offset:%d" % (v_sc + 4 * h, v_sc + 4 * h + 3, v_sa, off0 + 16 * h), "sc%d" % j))
            out.append(("ds", "ds_read_b64 v[%d:%d], v%d offset:%d" % (v_sc + 8, v_sc + 9, v_sb, off0 + 1024), "sc%d" % j))
            return out
        def dq_elem(f, q, c1, c0, dep):
            if not generic:
                return [("v", "v_fma_mix_f32 v%d, v%d, v%d, v%d op_sel_hi:[1,0,0]" % (f, q, c1, c0)) + dep]
            return [("v", "v_cvt_f32_i32 v%d, v%d" % (f, q)) + dep,
                    ("v", "v_cvt_pk_bf16_f32 v%d, 0, v%d" % (f, f)),
                    ("v", "v_add_f32 v%d, v%d, v%d" % (f, f, c0)),
                    ("v", "v_cvt_pk_bf16_f32 v%d, 0, v%d" % (f, f)),
                    ("v", "v_mul_f32 v%d, v%d, v%d" % (f, f, c1))]
        def dequant(j):
            slot = j % NS
            out = []
            first = True
            pend = []
            for ee in range(5):
                f = v_tmp + (ee % 2) * 8
                c1 = v_sc + 2 * ee; c0 = c1 + 1
                nr = 8 if ee < 4 else 4
                for r in range(nr):
                    dep = ((("q%d" % j,), ("sc%d" % j,)),) if first else ()
                    first = False
                    out += dq_elem(f + r, qreg(slot, r, ee), c1, c0, dep)
                    if r == 1 and pend: out.append(pend.pop(0))
                if ee == 3: out.append(("mark", "a"))
                if ee == 4: out.append(("mark", "b"))
                for h in range(nr // 2):
                    out.append(("v", "v_cvt_pk_bf16_f32 v%d, v%d, v%d" % (f + h, f + 2 * h, f + 2 * h + 1)))
                if ee < 4:
                    pend.append(("ds", "ds_write_b128 v%d, v[%d:%d] offset:%d" % (v_wa, f, f + 3, WB + (j % 2) * SLOT + ee * 2048), "w%d" % j))
                else:
                    pend.append(("ds", "ds_write_b64 v%d, v[%d:%d] offset:%d" % (v_wb, f, f + 1, WB + (j % 2) * SLOT + 8 * 2048), "w%d" % j))
            out += pend
            return out
        def xfrag_reads(gg, s):
            out = []
            par = s
            for mt in range(4):
                b = a_x + par * 16 + mt * 4
                dep = ((("x%d" % gg,), ()),) if mt == 0 else ()
                out.append(("ds", "ds_read_b128 a[%d:%d], v%d offset:%d" % (b, b + 3, v_xr[s], (gg % XR) * 8192 + mt * 2048), "xf%d_%d" % (gg, s)) + dep)
            return out
        def stores(mt):
            out = []
            tmpb = v_st
            for r in range(4):
                tq = tmpb + ((mt * 4 + r) % 4) * 4
                for h in range(4):
                    srcs = []
                    for t in (2 * h, 2 * h + 1):
                        k_, b = accloc[(mt, t)]
                        if k_ == "v": srcs.append(b + r)
                        else:
                            tr = tmpb + 16 + len(srcs)
                            out.append(("v", "v_accvgpr_read_b32 v%d, a%d" % (tr, b + r)))
                            srcs.append(tr)
                    out.append(("v", "v_cvt_pk_bf16_f32 v%d, v%d, v%d" % (tq + h, srcs[0], srcs[1])))
                out.append(("s", "s_add_u32 s%d, s%d, %d" % (s_os, s_oo, (mt * 16 + r) * 9216)))
                out.append(("vm", "buffer_store_dwordx4 v[%d:%d], v%d, s[%d:%d], s%d offen" % (tq, tq + 3, v_oa, S_O, S_O + 3, s_os), "st"))
            k_, b = accloc[(mt, 8)]
            for rp in range(2):
                srcs = []
                for r in (2 * rp, 2 * rp + 1):
                    if k_ == "v": srcs.append(b + r)
                    else:
                        tr = tmpb + 20 + len(srcs)
                        out.append(("v", "v_accvgpr_read_b32 v%d, a%d" % (tr, b + r)))
                        srcs.append(tr)
                td = tmpb + 24 + (mt * 2 + rp) % 4
                out.append(("v", "v_cvt_pk_bf16_f32 v%d, v%d, v%d" % (td, srcs[0], srcs[1])))
                out.append(("s", "s_add_u32 s%d, s%d, %d" % (s_os, s_oo, (mt * 16 + 2 * rp) * 9216)))
                out.append(("vm", "buffer_store_short v%d, v%d, s[%d:%d], s%d offen offset:256" % (td, v_ob, S_O, S_O + 3, s_os), "st"))
                out.append(("s", "s_add_u32 s%d, s%d, %d" % (s_os, s_oo, (mt * 16 + 2 * rp + 1) * 9216)))
                out.append(("vm", "buffer_store_short_d16_hi v%d, v%d, s[%d:%d], s%d offen offset:256" % (td, v_ob, S_O, S_O + 3, s_os), "st"))
            return out
        frags = [(j, s, t) for j in range(NG) for s in range(2) for t in range(T)]
        def frag_read(fi):
            j, s, t = frags[fi]
            b = a_fr + (fi % FR) * 4
            xv = (2 * s) ^ ((t >> 2) if t < 8 else 0)
            return ("ds", "ds_read_b128 a[%d:%d], v%d offset:%d" % (b, b + 3, v_r[xv], WB + (j % 2) * SLOT + t * 2048), "f%d" % fi)
        PF = FR - 1
        emit_items(scale_reads(0))
        if not generic: pst()
        emit_items([it for it in dequant(0) if it[0] != "mark"])
        if not generic: pst()
        if nq < NG: emit_items(load_q(nq)); nq += 1
        emit_items(scale_reads(1))
        emit_items(xfrag_reads(0, 0))
        g.need((), ("w0",))
        if not generic: pst()
        e("s_barrier")
        if not generic: pst()
        nfr = 0
        for fi in range(PF):
            emit_item(frag_read(fi)); nfr += 1
        fi = 0
        VSP = cfg["vsp"]
        for j in range(NG):
            if cfg.get("stamp") == 1 and not generic:
                e("s_memtime s[%d:%d]" % (STAMP0 + 2 + 2 * j, STAMP0 + 3 + 2 * j))
            if j < 3 and not generic: pst()
            P = xfrag_reads(j, 1)
            V = []
            if nx < NG: V += dma_x(nx); nx += 1
            D = []; qparts = None
            if j + 1 < NG:
                D = dequant(j + 1)
                if nq < NG: qparts = load_q_parts(nq); nq += 1
            X1 = xfrag_reads(j + 1, 0) if j + 1 < NG else []
            SCN = scale_reads(j + 2) if j + 2 < NG else []
            lastv = -100
            mi = 0
            ndq = len([1 for it in D if it[0] != "mark"])
            dq_done = 0
            DQ0 = cfg["dq0"]
            for s in range(2):
                for t in range(T):
                    fb = a_fr + (fi % FR) * 4
                    fl = s * T + t
                    if cfg.get("stamp") == 2 and not generic and j == 3 and fl < 16:
                        e("s_memtime s[%d:%d]" % (STAMP0 + 2 * fl, STAMP0 + 1 + 2 * fl))
                    if cfg.get("stamp") == 2 and not generic and j == 4 and fl == 0:
                        e("s_memtime s[%d:%d]" % (STAMP0 + 32, STAMP0 + 33))
                    if fl == BARF and j + 1 < NG:
                        while D:
                            it = D.pop(0)
                            if it[0] == "mark":
                                if qparts: V += qparts[it[1]]
                            else: emit_item(it)
                        assert nfr >= (j + 1) * 2 * T, (nfr, j)
                        g.need((), ("w%d" % (j + 1), "f%d" % ((j + 1) * 2 * T - 1)))
                        if "b" not in dis: e("s_barrier")
                        P += SCN; SCN = []
                    if fl == T + 1:
                        P += X1; X1 = []
                    for mt in range(4):
                        kk, ab = accloc[(mt, t)]
                        accs = "%s[%d:%d]" % (kk, ab, ab + 3)
                        g.need((), ("f%d" % fi, "xf%d_%d" % (j, s)))
                        csrc = "0" if (j == 0 and s == 0) else accs
                        xb_ = a_x + s * 16 + mt * 4
                        e("v_mfma_f32_16x16x32_bf16 %s, a[%d:%d], a[%d:%d], %s" % (accs, xb_, xb_ + 3, fb, fb + 3, csrc))
                        mi += 1
                        cnt = 0
                        if nfr < len(frags) and nfr <= fi + PF and (frags[nfr][0] == j or fl >= BARF):
                            emit_item(frag_read(nfr)); nfr += 1; cnt += 1
                        while P and cnt < 2:
                            emit_item(P.pop(0)); cnt += 1
                        if V and cnt < 2 and mi - lastv >= VSP:
                            while V and V[0][0] == "s": emit_item(V.pop(0))
                            if V: emit_item(V.pop(0)); cnt += 1; lastv = mi
                        if D and mi >= DQ0:
                            target = (ndq * (mi - DQ0 + 1) + (4 * BARF - 4 - DQ0) - 1) // max(4 * BARF - 4 - DQ0, 1)
                            while D and cnt < 2 and dq_done < target:
                                it = D.pop(0)
                                if it[0] == "mark":
                                    if qparts: V += qparts[it[1]]
                                    continue
                                emit_item(it); cnt += 1; dq_done += 1
                            while D and D[0][0] == "mark":
                                it = D.pop(0)
                                if qparts: V += qparts[it[1]]
                    fi += 1
            emit_items(P); emit_items(V)
        e("s_nop 7")
        e("s_nop 1")
        for mt in range(4): emit_items(stores(mt))
        if cfg.get("stamp") and not generic:
            if cfg.get("stamp") == 1:
                e("s_memtime s[%d:%d]" % (STAMP0 + 20, STAMP0 + 21))
                e("s_waitcnt vmcnt(0)")
                e("s_memtime s[%d:%d]" % (STAMP0 + 22, STAMP0 + 23))
            e("s_waitcnt lgkmcnt(0)")
            e("s_cmp_lg_u32 s2, 5")
            e("s_cbranch_scc1 L_end")
            e("s_cmp_lg_u32 s%d, 0" % s_w)
            e("s_cbranch_scc1 L_end")
            e("s_load_dwordx2 s[4:5], s[0:1], 40")
            e("s_waitcnt lgkmcnt(0)")
            e("s_mov_b32 s6, 256")
            e("s_mov_b32 s7, 0x00020000")
            for i in range(11 if cfg.get("stamp") == 1 else 16):
                e("s_sub_u32 s%d, s%d, s%d" % (STAMP0 + 2 + 2 * i, STAMP0 + 2 + 2 * i, STAMP0))
                e("v_mov_b32 v1, s%d" % (STAMP0 + 2 + 2 * i))
                e("v_mov_b32 v2, %d" % (4 * i))
                e("buffer_store_dword v1, v2, s[4:7], 0 offen")
        e("s_endpgm")

    body(False)
    g.label("L_generic")
    body(True)
    g.label("L_end")
    e("s_endpgm")
    tail = ['.section .rodata,"a"', ".p2align 6", ".amdhsa_kernel %s" % KNAME,
            "  .amdhsa_next_free_vgpr 512", "  .amdhsa_next_free_sgpr 102", "  .amdhsa_accum_offset 256",
            "  .amdhsa_group_segment_fixed_size 0", "  .amdhsa_kernarg_size 56", "  .amdhsa_user_sgpr_count 2",
            "  .amdhsa_user_sgpr_kernarg_segment_ptr 1", "  .amdhsa_system_sgpr_workgroup_id_x 1",
            "  .amdhsa_float_denorm_mode_32 3", "  .amdhsa_float_denorm_mode_16_64 3", ".end_amdhsa_kernel"]
    return "\n".join(hdr + g.L + tail) + "\n", NVG, LDS_BYTES

if __name__ == "__main__":
    ap = argparse.ArgumentParser()
    ap.add_argument("--ns", type=int, default=2)
    ap.add_argument("--xr", type=int, default=3)
    ap.add_argument("--fr", type=int, default=6)
    ap.add_argument("--fpg", type=int, default=2)
    ap.add_argument("--barf", type=int, default=14)
    ap.add_argument("--naccv", type=int, default=32)
    ap.add_argument("--dis", default="")
    ap.add_argument("--vsp", type=int, default=3)
    ap.add_argument("--dq0", type=int, default=4)
    ap.add_argument("--dsrc", type=int, default=1)
    ap.add_argument("--stamp", type=int, default=0)
    ap.add_argument("-o", default="standalone__weight_only_int_quip_2__prompt.s")
    a = ap.parse_args()
    cfg = dict(ns=a.ns, xr=a.xr, fr=a.fr, fpg=a.fpg, barf=a.barf, naccv=a.naccv, dis=a.dis, vsp=a.vsp, dq0=a.dq0, dsrc=a.dsrc, stamp=a.stamp)
    s, nvg, lds = build(cfg)
    open(a.o, "w").write(s)
    print("VGPRs used", nvg, "LDS", lds, "lines", s.count("\n"))
```

```python
import sys, argparse

M, K, N = 2048, 576, 4608
NG = 9
KNAME = "standalone__weight_only_int_quip_2__prompt_kernel"

class Gen:
    def __init__(self):
        self.L = []; self.vmq = []; self.lgq = []
    def e(self, s): self.L.append("    " + s)
    def label(self, s): self.L.append(s + ":")
    def vm(self, s, tag):
        self.e(s); self.vmq.append(tag)
        assert len(self.vmq) <= 62, "too many VMEM outstanding: %d" % len(self.vmq)
    def ds(self, s, tag):
        self.e(s); self.lgq.append(tag)
    def need(self, vmtags=(), lgtags=()):
        w = []
        nv = None
        for t in vmtags:
            idx = [i for i, x in enumerate(self.vmq) if x == t]
            if idx:
                n = len(self.vmq) - 1 - idx[-1]
                nv = n if nv is None else min(nv, n)
        if nv is not None:
            self.vmq = self.vmq[len(self.vmq) - nv:] if nv else []
            w.append("vmcnt(%d)" % nv)
        nl = None
        for t in lgtags:
            idx = [i for i, x in enumerate(self.lgq) if x == t]
            if idx:
                n = len(self.lgq) - 1 - idx[-1]
                nl = n if nl is None else min(nl, n)
        if nl is not None:
            nl = min(nl, 15)
            self.lgq = self.lgq[len(self.lgq) - nl:] if nl else []
            w.append("lgkmcnt(%d)" % nl)
        if w: self.e("s_waitcnt " + " ".join(w))

def magic(d, maxv):
    for sh in range(8, 24):
        mul = ((1 << sh) + d - 1) // d
        if all(((v * mul) >> sh) == v // d for v in range(maxv + 1)):
            assert maxv * mul < (1 << 32) and mul < (1 << 24)
            return mul, sh
    raise Exception("no magic")

def build(cfg):
    NS = cfg["ns"]; XR = cfg["xr"]; FR = cfg["fr"]; BARF = cfg["barf"]
    T = 9
    SLOT = T * 2048
    WB = 0
    TAB = 2 * SLOT
    FLAGS = TAB + NG * 144 * 8
    XB = (FLAGS + 64 + 1023) // 1024 * 1024
    XSL = 8192
    LDS_BYTES = XB + 4 * XR * XSL
    assert LDS_BYTES <= 163840, LDS_BYTES
    ACCOFF = 200
    m_r = [1, 2, 3, 4]; m_xr = [5, 6]; m_oa = 7; m_ob = 8
    m_tmp = 12
    m_acc = 48
    def accreg(mt, t): return m_acc + (t * 4 + mt) * 4
    a_x = 0; a_fr = 32
    NAG = 32 + 4 * FR
    assert ACCOFF + NAG <= 256
    h_qa, h_qb, h_wa, h_wb, h_sa, h_sb = 1, 2, 3, 4, 5, 6
    h_xd = [7, 8]
    h_tl = 9
    h_tmp = 12
    h_sc = 28
    h_pa = 40
    h_st = 72 if NS <= 3 else 56
    if NS > 3: h_pa = 40
    assert h_st + NS * 36 <= ACCOFF, (h_st, NS)

    g = Gen(); e = g.e
    hdr = ["; W4 dequant GEMM v5 (4 MFMA + 4 helper waves), generated by gen/gen7.py cfg=%s" % (cfg,),
           "; @launch grid=(256,1,1) block=(512,1,1) lds=%d" % LDS_BYTES,
           '.amdgcn_target "amdgcn-amd-amdhsa--gfx950"', ".text", ".globl %s" % KNAME, ".p2align 8",
           ".type %s,@function" % KNAME, "%s:" % KNAME]
    S_X, S_Q, S_SC, S_Z, S_O = 16, 20, 24, 28, 32
    s_w = 36; s_nblk = 37; s_mblk = 38; s_xw = 39
    s_xo = 40
    s_oo = 48; s_q0 = 49
    s_t0, s_t1, s_t2, s_t3 = 50, 51, 52, 53
    s_qs = 54; s_os = 58
    s_bad = 60; s_sv = 62; s_c24 = 64
    STAMP0 = 66
    stamp = cfg.get("stamp", 0)
    dis = cfg.get("dis", "")
    if stamp: e("s_memtime s[%d:%d]" % (STAMP0, STAMP0 + 1))
    e("s_cmp_ge_u32 s2, 256")
    e("s_cbranch_scc1 L_end")
    e("s_load_dwordx4 s[4:7], s[0:1], 0")
    e("s_load_dwordx4 s[8:11], s[0:1], 16")
    e("s_load_dwordx2 s[12:13], s[0:1], 32")
    e("v_lshrrev_b32 v12, 6, v0")
    e("s_and_b32 s%d, s2, 7" % s_t0)
    e("s_lshr_b32 s%d, s2, 3" % s_t1)
    e("v_readfirstlane_b32 s%d, v12" % s_w)
    e("s_and_b32 s%d, s%d, 3" % (s_t2, s_t1))
    e("s_lshl_b32 s%d, s%d, 2" % (s_nblk, s_t0))
    e("s_add_u32 s%d, s%d, s%d" % (s_nblk, s_nblk, s_t2))
    e("s_lshr_b32 s%d, s%d, 2" % (s_mblk, s_t1))
    e("s_lshl_b32 s%d, s%d, 8" % (s_t0, s_mblk))
    e("s_and_b32 s%d, s%d, 3" % (s_t3, s_w))
    e("s_lshl_b32 s%d, s%d, 6" % (s_t1, s_t3))
    e("s_add_u32 s%d, s%d, s%d" % (s_t0, s_t0, s_t1))
    e("s_mul_i32 s%d, s%d, %d" % (s_xw, s_t3, XR * XSL))
    e("s_add_u32 s%d, s%d, %d" % (s_xw, s_xw, XB))
    e("s_mul_i32 s%d, s%d, 288" % (s_t1, s_nblk))
    e("s_cmp_ge_u32 s%d, 4" % s_w)
    e("s_cbranch_scc1 L_helper")

    def srd(sd, sp, nbytes):
        e("s_mov_b32 s%d, s%d" % (sd, sp))
        e("s_and_b32 s%d, s%d, 0xffff" % (sd + 1, sp + 1))
        e("s_mov_b32 s%d, %d" % (sd + 2, nbytes))
        e("s_mov_b32 s%d, 0x00020000" % (sd + 3))
    def emit_item(it):
        k = it[0]
        if k == "vm" and it[2].startswith("x") and "x" in dis: return
        if k == "vm" and it[2].startswith("q") and "q" in dis: return
        if k == "vm" and it[2].startswith("st") and "s" in dis: return
        if k in ("s", "v"):
            if len(it) > 2: g.need(*it[2])
            e(it[1])
        elif k == "vm":
            if len(it) > 3: g.need(*it[3])
            g.vm(it[1], it[2])
        elif k == "ds":
            if len(it) > 3: g.need(*it[3])
            g.ds(it[1], it[2])
        else: raise Exception(k)
    def emit_items(items):
        for it in items: emit_item(it)
    def dump_stamps(wsel):
        e("s_memtime s[%d:%d]" % (STAMP0 + 20, STAMP0 + 21))
        e("s_waitcnt vmcnt(0)")
        e("s_memtime s[%d:%d]" % (STAMP0 + 22, STAMP0 + 23))
        e("s_waitcnt lgkmcnt(0)")
        e("s_cmp_lg_u32 s2, 5")
        e("s_cbranch_scc1 L_end")
        e("s_cmp_lg_u32 s%d, %d" % (s_w, wsel))
        e("s_cbranch_scc1 L_end")
        e("s_load_dwordx2 s[4:5], s[0:1], 40")
        e("s_waitcnt lgkmcnt(0)")
        e("s_mov_b32 s6, 256")
        e("s_mov_b32 s7, 0x00020000")
        for i in range(11):
            e("s_sub_u32 s%d, s%d, s%d" % (STAMP0 + 2 + 2 * i, STAMP0 + 2 + 2 * i, STAMP0))
            e("v_mov_b32 v1, s%d" % (STAMP0 + 2 + 2 * i))
            e("v_mov_b32 v2, %d" % (4 * i))
            e("buffer_store_dword v1, v2, s[4:7], 0 offen")

    g.vmq = []; g.lgq = []
    if cfg.get("prio", 1): e("s_setprio %d" % cfg.get("prio", 1))
    e("s_mul_i32 s%d, s%d, 9216" % (s_oo, s_t0))
    e("s_add_u32 s%d, s%d, s%d" % (s_oo, s_oo, s_t1))
    lane, kg, nb, t7, hh = 12, 13, 14, 15, 16
    e("v_and_b32 v%d, 63, v0" % lane)
    e("v_and_b32 v%d, 15, v0" % nb)
    e("v_lshrrev_b32 v%d, 4, v%d" % (kg, lane))
    e("v_lshrrev_b32 v%d, 1, v%d" % (t7, nb))
    e("v_xor_b32 v%d, v%d, v%d" % (t7, kg, t7))
    e("v_lshlrev_b32 v%d, 4, v%d" % (t7, t7))
    e("v_lshl_add_u32 v%d, v%d, 7, v%d" % (m_xr[0], nb, t7))
    e("v_add_u32 v%d, s%d, v%d" % (m_xr[0], s_xw, m_xr[0]))
    e("v_xor_b32 v%d, 64, v%d" % (m_xr[1], m_xr[0]))
    e("v_lshrrev_b32 v%d, 1, v%d" % (hh, nb))
    e("v_and_b32 v%d, 1, v%d" % (t7, nb))
    e("v_lshlrev_b32 v%d, 2, v%d" % (t7, t7))
    e("v_xor_b32 v%d, v%d, v%d" % (hh, hh, t7))
    e("v_xor_b32 v%d, v%d, v%d" % (t7, kg, hh))
    e("v_lshlrev_b32 v%d, 4, v%d" % (t7, t7))
    e("v_lshl_add_u32 v%d, v%d, 7, v%d" % (m_r[0], nb, t7))
    for xx in range(1, 4):
        e("v_xor_b32 v%d, %d, v%d" % (m_r[xx], xx * 32, m_r[0]))
    e("v_mul_u32_u24 v%d, %d, v%d" % (m_ob, 4 * 9216, kg))
    e("v_lshl_add_u32 v%d, v%d, 4, v%d" % (m_oa, nb, m_ob))
    e("v_lshl_add_u32 v%d, v%d, 1, v%d" % (m_ob, nb, m_ob))
    mul72, sh72 = magic(72, 255)
    pa = m_acc
    gq = pa + 8; cp = pa + 9; szo = pa + 10; v_tw = pa + 6
    e("v_mul_u32_u24 v%d, %d, v0" % (gq, mul72))
    e("v_lshrrev_b32 v%d, %d, v%d" % (gq, sh72, gq))
    e("v_mul_u32_u24 v%d, 72, v%d" % (cp, gq))
    e("v_sub_u32 v%d, v0, v%d" % (cp, cp))
    e("v_mul_u32_u24 v%d, 9216, v%d" % (szo, gq))
    e("v_lshl_add_u32 v%d, v%d, 2, v%d" % (szo, cp, szo))
    e("v_mul_u32_u24 v%d, 1152, v%d" % (v_tw, gq))
    e("v_lshl_add_u32 v%d, v%d, 4, v%d" % (v_tw, cp, v_tw))
    e("s_add_u32 s%d, s%d, %d" % (s_t2, s_t1, 3 * 9216))
    e("s_add_u32 s%d, s%d, %d" % (s_t3, s_t1, 6 * 9216))
    e("s_mov_b32 s%d, 0x4b800000" % s_c24)
    e("s_waitcnt lgkmcnt(0)")
    srd(S_O, 12, M * N * 2); srd(S_SC, 8, NG * N * 2); srd(S_Z, 10, NG * N * 2)
    for i, so in enumerate((s_t1, s_t2, s_t3)):
        g.vm("buffer_load_dword v%d, v%d, s[%d:%d], s%d offen" % (pa + i, szo, S_SC, S_SC + 3, so), "sz")
        g.vm("buffer_load_dword v%d, v%d, s[%d:%d], s%d offen" % (pa + 3 + i, szo, S_Z, S_Z + 3, so), "sz")
    sl, sh_, zl, zh = pa + 12, pa + 13, pa + 14, pa + 15
    o4 = pa + 24; tt = pa + 28
    g.need(("sz",))
    e("v_cmp_gt_u32 vcc, 216, v0")
    e("s_and_saveexec_b64 s[%d:%d], vcc" % (s_sv, s_sv + 1))
    e("s_mov_b64 s[%d:%d], 0" % (s_bad, s_bad + 1))
    for i in range(3):
        e("v_lshlrev_b32 v%d, 16, v%d" % (sl, pa + i))
        e("v_and_b32 v%d, 0xffff0000, v%d" % (sh_, pa + i))
        e("v_lshlrev_b32 v%d, 16, v%d" % (zl, pa + 3 + i))
        e("v_and_b32 v%d, 0xffff0000, v%d" % (zh, pa + 3 + i))
        e("v_mul_f32 v%d, s%d, v%d" % (o4, s_c24, sl))
        e("v_mul_f32_e64 v%d, -v%d, v%d" % (o4 + 1, zl, sl))
        e("v_mul_f32 v%d, s%d, v%d" % (o4 + 2, s_c24, sh_))
        e("v_mul_f32_e64 v%d, -v%d, v%d" % (o4 + 3, zh, sh_))
        g.ds("ds_write_b128 v%d, v[%d:%d] offset:%d" % (v_tw, o4, o4 + 3, TAB + i * 3 * 1152), "tab")
        for (sv, zv) in ((sl, zl), (sh_, zh)):
            e("v_rndne_f32 v%d, v%d" % (tt, zv))
            e("v_cmp_neq_f32 vcc, v%d, v%d" % (tt, zv))
            e("s_or_b64 s[%d:%d], s[%d:%d], vcc" % (s_bad, s_bad + 1, s_bad, s_bad + 1))
            e("v_and_b32 v%d, 0x7fffffff, v%d" % (tt, zv))
            e("v_cmp_lt_u32 vcc, 0x43000000, v%d" % tt)
            e("s_or_b64 s[%d:%d], s[%d:%d], vcc" % (s_bad, s_bad + 1, s_bad, s_bad + 1))
            e("v_and_b32 v%d, 0x7fffffff, v%d" % (tt, sv))
            e("v_cmp_ne_u32 s[%d:%d], 0, v%d" % (s_os, s_os + 1, tt))
            e("v_subrev_u32 v%d, %d, v%d" % (tt, 27 << 23, tt))
            e("v_cmp_le_u32 vcc, %d, v%d" % (200 << 23, tt))
            e("s_and_b64 vcc, vcc, s[%d:%d]" % (s_os, s_os + 1))
            e("s_or_b64 s[%d:%d], s[%d:%d], vcc" % (s_bad, s_bad + 1, s_bad, s_bad + 1))
        g.need((), ("tab",))
    e("s_mov_b64 exec, s[%d:%d]" % (s_sv, s_sv + 1))
    e("s_cmp_lg_u64 s[%d:%d], 0" % (s_bad, s_bad + 1))
    e("s_cselect_b32 s%d, 1, 0" % s_os)
    e("s_lshl_b32 s%d, s%d, 2" % (s_os + 1, s_w))
    e("v_mov_b32 v%d, s%d" % (tt, s_os))
    e("v_mov_b32 v%d, s%d" % (tt + 1, s_os + 1))
    g.ds("ds_write_b32 v%d, v%d offset:%d" % (tt + 1, tt, FLAGS), "tab")
    e("v_mov_b32 v20, 0")
    g.need((), ("tab",))
    e("s_barrier")
    g.ds("ds_read_b128 v[16:19], v20 offset:%d" % FLAGS, "flag")
    g.need((), ("flag",))
    e("v_or_b32 v16, v16, v17")
    e("v_or3_b32 v16, v16, v18, v19")
    e("s_nop 0")
    e("v_readfirstlane_b32 s%d, v16" % s_os)
    e("s_cmp_eq_u32 s%d, 0" % s_os)
    e("s_cbranch_scc1 L_m_fast")
    e("s_barrier")
    e("v_cmp_gt_u32 vcc, 216, v0")
    e("s_and_saveexec_b64 s[%d:%d], vcc" % (s_sv, s_sv + 1))
    for i in range(3):
        e("v_lshlrev_b32 v%d, 16, v%d" % (o4, pa + i))
        e("v_and_b32 v%d, 0xffff0000, v%d" % (o4 + 2, pa + i))
        e("v_lshlrev_b32 v%d, 16, v%d" % (o4 + 1, pa + 3 + i))
        e("v_and_b32 v%d, 0xffff0000, v%d" % (o4 + 3, pa + 3 + i))
        e("v_xor_b32 v%d, 0x80000000, v%d" % (o4 + 1, o4 + 1))
        e("v_xor_b32 v%d, 0x80000000, v%d" % (o4 + 3, o4 + 3))
        g.ds("ds_write_b128 v%d, v[%d:%d] offset:%d" % (v_tw, o4, o4 + 3, TAB + i * 3 * 1152), "tab")
        g.need((), ("tab",))
    e("s_mov_b64 exec, s[%d:%d]" % (s_sv, s_sv + 1))
    e("s_barrier")
    e("s_barrier")
    g.label("L_m_fast")
    def xfrag_reads(gg, s):
        out = []
        for mt in range(4):
            b = a_x + s * 16 + mt * 4
            out.append(("ds", "ds_read_b128 a[%d:%d], v%d offset:%d" % (b, b + 3, m_xr[s], (gg % XR) * XSL + mt * 2048), "xf%d_%d" % (gg, s)))
        return out
    def stores(mt):
        out = []
        for r in range(4):
            tq = m_tmp + r * 4
            for h in range(4):
                out.append(("v", "v_cvt_pk_bf16_f32 v%d, v%d, v%d" % (tq + h, accreg(mt, 2 * h) + r, accreg(mt, 2 * h + 1) + r)))
            out.append(("s", "s_add_u32 s%d, s%d, %d" % (s_os, s_oo, (mt * 16 + r) * 9216)))
            out.append(("vm", "buffer_store_dwordx4 v[%d:%d], v%d, s[%d:%d], s%d offen" % (tq, tq + 3, m_oa, S_O, S_O + 3, s_os), "st"))
        b = accreg(mt, 8)
        for rp in range(2):
            td = m_tmp + 24 + (mt * 2 + rp) % 4
            out.append(("v", "v_cvt_pk_bf16_f32 v%d, v%d, v%d" % (td, b + 2 * rp, b + 2 * rp + 1)))
            out.append(("s", "s_add_u32 s%d, s%d, %d" % (s_os, s_oo, (mt * 16 + 2 * rp) * 9216)))
            out.append(("vm", "buffer_store_short v%d, v%d, s[%d:%d], s%d offen offset:256" % (td, m_ob, S_O, S_O + 3, s_os), "st"))
            out.append(("s", "s_add_u32 s%d, s%d, %d" % (s_os, s_oo, (mt * 16 + 2 * rp + 1) * 9216)))
            out.append(("vm", "buffer_store_short_d16_hi v%d, v%d, s[%d:%d], s%d offen offset:256" % (td, m_ob, S_O, S_O + 3, s_os), "st"))
        return out
    LS = cfg.get("lastsplit", 2)
    mtsets = {1: [(0, 1, 2, 3)], 2: [(0, 1), (2, 3)], 4: [(0,), (1,), (2,), (3,)]}[LS]
    frags = [(j, s, t, (0, 1, 2, 3)) for j in range(NG - 1) for s in range(2) for t in range(T)]
    frags += [(NG - 1, s, t, ms) for ms in mtsets for s in range(2) for t in range(T)]
    def frag_read(fi):
        j, s, t, _ = frags[fi]
        b = a_fr + (fi % FR) * 4
        xv = (2 * s) ^ ((t >> 2) if t < 8 else 0)
        return ("ds", "ds_read_b128 a[%d:%d], v%d offset:%d" % (b, b + 3, m_r[xv], WB + (j % 2) * SLOT + t * 2048), "f%d" % fi)
    PF = FR - 1
    emit_items(xfrag_reads(0, 0))
    nfr = 0
    for fi in range(PF):
        emit_item(frag_read(fi)); nfr += 1
    P = []; ST = []; stdelay = 0
    prevj = -1; fl = 0; prevms = None
    for fi, (j, s, t, ms) in enumerate(frags):
        if j != prevj:
            emit_items(P); P = []
            if stamp: e("s_memtime s[%d:%d]" % (STAMP0 + 2 + 2 * j, STAMP0 + 3 + 2 * j))
            P = xfrag_reads(j, 1)
            fl = 0; prevj = j
        if j == NG - 1 and prevms is not None and ms != prevms:
            for mt in prevms: ST += stores(mt)
            stdelay = 6
        prevms = ms if j == NG - 1 else None
        fb = a_fr + (fi % FR) * 4
        if fl == BARF and j + 1 < NG:
            assert nfr >= (j + 1) * 2 * T, (nfr, j)
            g.need((), ("f%d" % ((j + 1) * 2 * T - 1),))
            e("s_barrier")
            P += xfrag_reads(j + 1, 0)
        for mt in ms:
            ab = accreg(mt, t)
            accs = "v[%d:%d]" % (ab, ab + 3)
            g.need((), ("f%d" % fi, "xf%d_%d" % (j, s)))
            csrc = "0" if (j == 0 and s == 0) else accs
            xb_ = a_x + s * 16 + mt * 4
            e("v_mfma_f32_16x16x32_bf16 %s, a[%d:%d], a[%d:%d], %s" % (accs, xb_, xb_ + 3, fb, fb + 3, csrc))
            cnt = 0
            if nfr < len(frags) and nfr <= fi + PF and (frags[nfr][0] == j or fl >= BARF):
                emit_item(frag_read(nfr)); nfr += 1; cnt += 1
            while P and cnt < 1:
                emit_item(P.pop(0)); cnt += 1
            if stdelay: stdelay -= 1
            else:
                while ST and (cnt < 2 or ST[0][0] == "s"):
                    it = ST.pop(0); emit_item(it); cnt += (it[0] != "s")
        fl += 1
    emit_items(P)
    emit_items(ST)
    e("s_nop 7")
    e("s_nop 1")
    for mt in prevms: emit_items(stores(mt))
    if stamp: dump_stamps(cfg.get("stw", 0))
    e("s_endpgm")

    g.label("L_helper")
    g.vmq = []; g.lgq = []
    e("s_mul_i32 s%d, s%d, 1152" % (s_xo, s_t0))
    for rb in range(1, 8):
        e("s_add_u32 s%d, s%d, %d" % (s_xo + rb, s_xo, rb * 8 * 1152))
    e("s_mul_i32 s%d, s%d, 576" % (s_q0, s_nblk))
    e("s_mov_b32 s%d, 0x4b800000" % s_c24)
    lane = h_tmp + 1; kg = h_tmp + 2; kb = h_tmp + 4; nb = h_tmp + 5; t7 = h_tmp + 7
    k8 = h_tmp + 8; nq_ = h_tmp + 9; hh = h_tmp + 10; ii = h_tmp + 11; t12 = h_tmp + 12; tl = h_tl
    e("v_and_b32 v%d, 63, v0" % lane)
    e("v_and_b32 v%d, 255, v0" % tl)
    e("v_lshrrev_b32 v%d, 4, v%d" % (kb, tl))
    e("v_and_b32 v%d, 15, v0" % nb)
    e("v_lshrrev_b32 v%d, 4, v%d" % (kg, lane))
    e("v_lshrrev_b32 v%d, 3, v%d" % (t7, lane))
    e("v_mul_u32_u24 v%d, 1152, v%d" % (h_xd[0], t7))
    e("v_and_b32 v%d, 7, v%d" % (t7, lane))
    e("v_xor_b32 v%d, v%d, v%d" % (t7, t7, kg))
    e("v_lshl_add_u32 v%d, v%d, 4, v%d" % (h_xd[0], t7, h_xd[0]))
    e("v_xor_b32 v%d, 64, v%d" % (h_xd[1], h_xd[0]))
    e("v_mul_u32_u24 v%d, %d, v%d" % (h_qb, 4 * 18432, kb))
    e("v_lshl_add_u32 v%d, v%d, 2, v%d" % (h_qb, nb, h_qb))
    e("v_add_u32 v%d, 512, v%d" % (h_qb, h_qb))
    e("v_lshrrev_b32 v%d, 5, v%d" % (k8, tl))
    e("v_and_b32 v%d, 31, v0" % nq_)
    e("v_mul_u32_u24 v%d, %d, v%d" % (h_qa, 8 * 18432, k8))
    e("v_lshl_add_u32 v%d, v%d, 4, v%d" % (h_qa, nq_, h_qa))
    pa = h_pa
    e("s_waitcnt lgkmcnt(0)")
    srd(S_X, 4, M * K * 2); srd(S_Q, 6, K * N * 4); srd(S_SC, 8, NG * N * 2); srd(S_Z, 10, NG * N * 2)
    def qreg(slot, r, ee):
        b = h_st + slot * 36
        return b + r * 4 + ee if ee < 4 else b + 32 + r
    def load_q(j):
        slot = j % NS
        out = []
        for r in range(8):
            b = qreg(slot, r, 0)
            out.append(("s", "s_add_u32 s%d, s%d, %d" % (s_qs, s_q0, (j * 64 + r) * 18432)))
            out.append(("vm", "buffer_load_dwordx4 v[%d:%d], v%d, s[%d:%d], s%d offen" % (b, b + 3, h_qa, S_Q, S_Q + 3, s_qs), "q%d" % j))
        for r in range(4):
            out.append(("s", "s_add_u32 s%d, s%d, %d" % (s_qs + 1, s_q0, (j * 64 + r) * 18432)))
            out.append(("vm", "buffer_load_dword v%d, v%d, s[%d:%d], s%d offen" % (qreg(slot, r, 4), h_qb, S_Q, S_Q + 3, s_qs + 1), "q%d" % j))
        return out
    def dma_x(gg):
        res = []
        for rb in range(8):
            c = (gg % XR) * XSL + rb * 1024 - gg * 128
            if c >= 0: res.append(("s", "s_add_u32 m0, s%d, %d" % (s_xw, c)))
            else: res.append(("s", "s_sub_u32 m0, s%d, %d" % (s_xw, -c)))
            res.append(("s", "s_nop 0"))
            res.append(("vm", "buffer_load_dwordx4 v%d, s[%d:%d], s%d offen offset:%d lds" % (h_xd[rb & 1], S_X, S_X + 3, s_xo + rb, gg * 128), "x%d" % gg))
        return res
    d0 = pa + 16
    e("v_lshlrev_b32 v%d, 3, v%d" % (t7, nq_))
    e("v_lshl_add_u32 v%d, v%d, 1, 0" % (t12, nb))
    g.vm("buffer_load_dwordx2 v[%d:%d], v%d, s[%d:%d], s%d offen" % (d0, d0 + 1, t7, S_SC, S_SC + 3, s_t1), "d0")
    g.vm("buffer_load_dwordx2 v[%d:%d], v%d, s[%d:%d], s%d offen" % (d0 + 2, d0 + 3, t7, S_Z, S_Z + 3, s_t1), "d0")
    g.vm("buffer_load_ushort v%d, v%d, s[%d:%d], s%d offen offset:256" % (d0 + 4, t12, S_SC, S_SC + 3, s_t1), "d0")
    g.vm("buffer_load_ushort v%d, v%d, s[%d:%d], s%d offen offset:256" % (d0 + 5, t12, S_Z, S_Z + 3, s_t1), "d0")
    emit_items(load_q(0)); nq = 1
    emit_items(dma_x(0)); nx = 1
    e("v_lshrrev_b32 v%d, 1, v%d" % (hh, nb))
    e("v_and_b32 v%d, 1, v%d" % (t7, nb))
    e("v_lshlrev_b32 v%d, 2, v%d" % (t7, t7))
    e("v_xor_b32 v%d, v%d, v%d" % (hh, hh, t7))
    e("v_lshrrev_b32 v%d, 1, v%d" % (t7, kb))
    e("v_xor_b32 v%d, v%d, v%d" % (t7, t7, hh))
    e("v_lshlrev_b32 v%d, 4, v%d" % (t7, t7))
    e("v_lshl_add_u32 v%d, v%d, 7, v%d" % (h_wb, nb, t7))
    e("v_and_b32 v%d, 1, v%d" % (t7, kb))
    e("v_lshl_add_u32 v%d, v%d, 3, v%d" % (h_wb, t7, h_wb))
    e("v_lshrrev_b32 v%d, 1, v%d" % (ii, nq_))
    e("v_lshrrev_b32 v%d, 1, v%d" % (hh, ii))
    e("v_and_b32 v%d, 1, v%d" % (t7, ii))
    e("v_lshlrev_b32 v%d, 2, v%d" % (t7, t7))
    e("v_xor_b32 v%d, v%d, v%d" % (hh, hh, t7))
    e("v_and_b32 v%d, 1, v%d" % (t12, nq_))
    e("v_lshlrev_b32 v%d, 1, v%d" % (t7, t12))
    e("v_xor_b32 v%d, v%d, v%d" % (hh, hh, t7))
    e("v_xor_b32 v%d, v%d, v%d" % (hh, hh, k8))
    e("v_lshlrev_b32 v%d, 4, v%d" % (hh, hh))
    e("v_lshl_add_u32 v%d, v%d, 6, v%d" % (t7, t12, ii))
    e("v_lshl_add_u32 v%d, v%d, 7, v%d" % (h_wa, t7, hh))
    e("v_lshlrev_b32 v%d, 5, v%d" % (h_sa, nq_))
    e("v_lshlrev_b32 v%d, 3, v%d" % (h_sb, nb))
    sl, sh_, zl, zh = pa + 12, pa + 13, pa + 14, pa + 15
    o4 = pa + 24; tt = pa + 28
    def scale_reads(j):
        out = []
        off0 = TAB + j * 1152
        for h in range(2):
            out.append(("ds", "ds_read_b128 v[%d:%d], v%d offset:%d" % (h_sc + 4 * h, h_sc + 4 * h + 3, h_sa, off0 + 16 * h), "sc%d" % j))
        out.append(("ds", "ds_read_b64 v[%d:%d], v%d offset:%d" % (h_sc + 8, h_sc + 9, h_sb, off0 + 1024), "sc%d" % j))
        return out
    def dq_elem(generic, f, q, c1, c0, dep):
        if not generic:
            return [("v", "v_fma_mix_f32 v%d, v%d, v%d, v%d op_sel_hi:[1,0,0]" % (f, q, c1, c0)) + dep]
        return [("v", "v_cvt_f32_i32 v%d, v%d" % (f, q)) + dep,
                ("v", "v_cvt_pk_bf16_f32 v%d, 0, v%d" % (f, f)),
                ("v", "v_add_f32 v%d, v%d, v%d" % (f, f, c0)),
                ("v", "v_cvt_pk_bf16_f32 v%d, 0, v%d" % (f, f)),
                ("v", "v_mul_f32 v%d, v%d, v%d" % (f, f, c1))]
    def dequant(j, generic):
        slot = j % NS
        out = []; first = True; pend = []
        for ee in range(5):
            f = h_tmp + (ee % 2) * 8
            c1 = h_sc + 2 * ee; c0 = c1 + 1
            nr = 8 if ee < 4 else 4
            for r in range(nr):
                dep = ((("q%d" % j,), ("sc%d" % j,)),) if first else ()
                first = False
                out += dq_elem(generic, f + r, qreg(slot, r, ee), c1, c0, dep)
                if r == 1 and pend: out.append(pend.pop(0))
            for h in range(nr // 2):
                out.append(("v", "v_cvt_pk_bf16_f32 v%d, v%d, v%d" % (f + h, f + 2 * h, f + 2 * h + 1)))
            if ee < 4:
                pend.append(("ds", "ds_write_b128 v%d, v[%d:%d] offset:%d" % (h_wa, f, f + 3, WB + (j % 2) * SLOT + ee * 2048), "w%d" % j))
            else:
                pend.append(("ds", "ds_write_b64 v%d, v[%d:%d] offset:%d" % (h_wb, f, f + 1, WB + (j % 2) * SLOT + 8 * 2048), "w%d" % j))
        out += pend
        return out
    g.need(("d0",))
    for ee in range(5):
        if ee < 4:
            sp = d0 + ee // 2; zp = d0 + 2 + ee // 2
            if ee % 2 == 0:
                e("v_lshlrev_b32 v%d, 16, v%d" % (sl, sp)); e("v_lshlrev_b32 v%d, 16, v%d" % (zl, zp))
            else:
                e("v_and_b32 v%d, 0xffff0000, v%d" % (sl, sp)); e("v_and_b32 v%d, 0xffff0000, v%d" % (zl, zp))
        else:
            e("v_lshlrev_b32 v%d, 16, v%d" % (sl, d0 + 4)); e("v_lshlrev_b32 v%d, 16, v%d" % (zl, d0 + 5))
        e("v_mul_f32 v%d, s%d, v%d" % (h_sc + 2 * ee, s_c24, sl))
        e("v_mul_f32_e64 v%d, -v%d, v%d" % (h_sc + 2 * ee + 1, zl, sl))
    emit_items(dequant(0, False))
    g.need(("x0",), ("w0",))
    e("s_barrier")
    e("v_mov_b32 v%d, 0" % tt)
    g.ds("ds_read_b128 v[%d:%d], v%d offset:%d" % (o4, o4 + 3, tt, FLAGS), "flag")
    emit_items(load_q(1)); nq = 2
    emit_items(dma_x(1)); nx = 2
    g.need((), ("flag",))
    e("v_or_b32 v%d, v%d, v%d" % (o4, o4, o4 + 1))
    e("v_or3_b32 v%d, v%d, v%d, v%d" % (o4, o4, o4 + 2, o4 + 3))
    e("s_nop 0")
    e("v_readfirstlane_b32 s%d, v%d" % (s_os, o4))
    e("s_cmp_lg_u32 s%d, 0" % s_os)
    e("s_cbranch_scc1 L_h_generic")
    saved = (list(g.vmq), list(g.lgq), nq, nx)
    def hbody(generic):
        g.vmq, g.lgq = list(saved[0]), list(saved[1])
        nq, nx = saved[2], saved[3]
        if generic:
            e("s_barrier")
            e("s_barrier")
            emit_items(scale_reads(0))
            emit_items(dequant(0, True))
            g.need((), ("w0",))
            e("s_barrier")
        emit_items(scale_reads(1))
        V = []
        for j in range(NG - 1):
            if stamp and not generic: e("s_memtime s[%d:%d]" % (STAMP0 + 2 + 2 * j, STAMP0 + 3 + 2 * j))
            D = dequant(j + 1, generic)
            while True:
                added = False
                if nq < NG and nq <= j + NS and nq <= nx + 0:
                    V += load_q(nq); nq += 1; added = True
                elif nx < NG and nx <= j + 2:
                    V += dma_x(nx); nx += 1; added = True
                elif nq < NG and nq <= j + NS:
                    V += load_q(nq); nq += 1; added = True
                if not added: break
            per = cfg.get("ratio", 3) * (5 if generic else 1)
            while any(it[0] == "vm" and it[2] == "q%d" % (j + 1) for it in V):
                emit_item(V.pop(0))
            while D:
                while V and V[0][0] == "s": emit_item(V.pop(0))
                if V: emit_item(V.pop(0))
                for _ in range(per):
                    if D: emit_item(D.pop(0))
            while any(it[0] == "vm" and it[2] == "x%d" % (j + 1) for it in V):
                emit_item(V.pop(0))
            if j == NG - 2: emit_items(V); V = []
            if j + 2 < NG: emit_items(scale_reads(j + 2))
            g.need(("x%d" % (j + 1),), ("w%d" % (j + 1),))
            e("s_barrier")
        if stamp and not generic: dump_stamps(cfg.get("stw", 0))
        e("s_endpgm")
    hbody(False)
    g.label("L_h_generic")
    hbody(True)
    g.label("L_end")
    e("s_endpgm")
    tail = ['.section .rodata,"a"', ".p2align 6", ".amdhsa_kernel %s" % KNAME,
            "  .amdhsa_next_free_vgpr %d" % (ACCOFF + NAG), "  .amdhsa_next_free_sgpr 102", "  .amdhsa_accum_offset %d" % ACCOFF,
            "  .amdhsa_group_segment_fixed_size 0", "  .amdhsa_kernarg_size 56", "  .amdhsa_user_sgpr_count 2",
            "  .amdhsa_user_sgpr_kernarg_segment_ptr 1", "  .amdhsa_system_sgpr_workgroup_id_x 1",
            "  .amdhsa_float_denorm_mode_32 3", "  .amdhsa_float_denorm_mode_16_64 3", ".end_amdhsa_kernel"]
    return "\n".join(hdr + g.L + tail) + "\n", ACCOFF + NAG, LDS_BYTES

if __name__ == "__main__":
    ap = argparse.ArgumentParser()
    ap.add_argument("--ns", type=int, default=3)
    ap.add_argument("--xr", type=int, default=3)
    ap.add_argument("--fr", type=int, default=6)
    ap.add_argument("--barf", type=int, default=14)
    ap.add_argument("--prio", type=int, default=1)
    ap.add_argument("--dis", default="")
    ap.add_argument("--ratio", type=int, default=3)
    ap.add_argument("--lastsplit", type=int, default=2)
    ap.add_argument("--stamp", type=int, default=0)
    ap.add_argument("--stw", type=int, default=0)
    ap.add_argument("-o", default="standalone__weight_only_int_quip_2__prompt.s")
    a = ap.parse_args()
    cfg = dict(ns=a.ns, xr=a.xr, fr=a.fr, barf=a.barf, prio=a.prio, dis=a.dis, ratio=a.ratio, lastsplit=a.lastsplit, stamp=a.stamp, stw=a.stw)
    s, nvg, lds = build(cfg)
    open(a.o, "w").write(s)
    print("regs", nvg, "LDS", lds, "lines", s.count("\n"))
```

```python
import sys, argparse

M, K, N = 2048, 576, 4608
NG = 9
KNAME = "standalone__weight_only_int_quip_2__prompt_kernel"

class Gen:
    def __init__(self):
        self.L = []; self.vmq = []; self.lgq = []
    def e(self, s): self.L.append("    " + s)
    def label(self, s): self.L.append(s + ":")
    def vm(self, s, tag):
        self.e(s); self.vmq.append(tag)
        assert len(self.vmq) <= 62, "too many VMEM outstanding: %d" % len(self.vmq)
    def ds(self, s, tag):
        self.e(s); self.lgq.append(tag)
    def need(self, vmtags=(), lgtags=()):
        w = []
        nv = None
        for t in vmtags:
            idx = [i for i, x in enumerate(self.vmq) if x == t]
            if idx:
                n = len(self.vmq) - 1 - idx[-1]
                nv = n if nv is None else min(nv, n)
        if nv is not None:
            self.vmq = self.vmq[len(self.vmq) - nv:] if nv else []
            w.append("vmcnt(%d)" % nv)
        nl = None
        for t in lgtags:
            idx = [i for i, x in enumerate(self.lgq) if x == t]
            if idx:
                n = len(self.lgq) - 1 - idx[-1]
                nl = n if nl is None else min(nl, n)
        if nl is not None:
            nl = min(nl, 15)
            self.lgq = self.lgq[len(self.lgq) - nl:] if nl else []
            w.append("lgkmcnt(%d)" % nl)
        if w: self.e("s_waitcnt " + " ".join(w))

def magic(d, maxv):
    for sh in range(8, 24):
        mul = ((1 << sh) + d - 1) // d
        if all(((v * mul) >> sh) == v // d for v in range(maxv + 1)):
            assert maxv * mul < (1 << 32) and mul < (1 << 24)
            return mul, sh
    raise Exception("no magic")

def build(cfg):
    NS = cfg["ns"]; XR = cfg["xr"]; FR = cfg["fr"]; BARF = cfg["barf"]
    T = 9
    SLOT = T * 2048
    WB = 0
    TAB = 2 * SLOT
    FLAGS = TAB + NG * 144 * 8
    XB = (FLAGS + 64 + 1023) // 1024 * 1024
    XSL = 8192
    LDS_BYTES = XB + 4 * XR * XSL
    assert LDS_BYTES <= 163840, LDS_BYTES
    ACCOFF = 200
    m_r = [1, 2, 3, 4]; m_xr = [5, 6]; m_oa = 7; m_ob = 8
    m_px, m_pq, m_pd = 9, 10, 11
    m_tmp = 12
    m_acc = 48
    def accreg(mt, t): return m_acc + (t * 4 + mt) * 4
    a_x = 0; a_fr = 32
    NAG = 32 + 4 * FR
    assert ACCOFF + NAG <= 256
    h_qa, h_qb, h_wa, h_wb, h_sa, h_sb = 1, 2, 3, 4, 5, 6
    h_xd = [7, 8]
    h_tl = 9
    h_tmp = 12
    h_sc = 28
    h_pa = 40
    h_st = 72 if NS <= 3 else 56
    if NS > 3: h_pa = 40
    assert h_st + NS * 36 <= ACCOFF, (h_st, NS)

    g = Gen(); e = g.e
    hdr = ["; W4 dequant GEMM v5 (4 MFMA + 4 helper waves), generated by gen/gen8.py cfg=%s" % (cfg,),
           "; @launch grid=(256,1,1) block=(512,1,1) lds=%d" % LDS_BYTES,
           '.amdgcn_target "amdgcn-amd-amdhsa--gfx950"', ".text", ".globl %s" % KNAME, ".p2align 8",
           ".type %s,@function" % KNAME, "%s:" % KNAME]
    S_X, S_Q, S_SC, S_Z, S_O = 16, 20, 24, 28, 32
    s_w = 36; s_nblk = 37; s_mblk = 38; s_xw = 39
    s_xo = 40
    s_oo = 48; s_q0 = 49
    s_t0, s_t1, s_t2, s_t3 = 50, 51, 52, 53
    s_qs = 54; s_os = 58
    s_bad = 60; s_sv = 62; s_c24 = 64; s_pfq = 44
    STAMP0 = 66
    stamp = cfg.get("stamp", 0)
    dis = cfg.get("dis", "")
    if stamp: e("s_memtime s[%d:%d]" % (STAMP0, STAMP0 + 1))
    e("s_cmp_ge_u32 s2, 256")
    e("s_cbranch_scc1 L_end")
    e("s_load_dwordx4 s[4:7], s[0:1], 0")
    e("s_load_dwordx4 s[8:11], s[0:1], 16")
    e("s_load_dwordx2 s[12:13], s[0:1], 32")
    e("v_lshrrev_b32 v12, 6, v0")
    e("s_and_b32 s%d, s2, 7" % s_t0)
    e("s_lshr_b32 s%d, s2, 3" % s_t1)
    e("v_readfirstlane_b32 s%d, v12" % s_w)
    e("s_and_b32 s%d, s%d, 3" % (s_t2, s_t1))
    e("s_lshl_b32 s%d, s%d, 2" % (s_nblk, s_t0))
    e("s_add_u32 s%d, s%d, s%d" % (s_nblk, s_nblk, s_t2))
    e("s_lshr_b32 s%d, s%d, 2" % (s_mblk, s_t1))
    e("s_lshl_b32 s%d, s%d, 8" % (s_t0, s_mblk))
    e("s_and_b32 s%d, s%d, 3" % (s_t3, s_w))
    e("s_lshl_b32 s%d, s%d, 6" % (s_t1, s_t3))
    e("s_add_u32 s%d, s%d, s%d" % (s_t0, s_t0, s_t1))
    e("s_mul_i32 s%d, s%d, %d" % (s_xw, s_t3, XR * XSL))
    e("s_add_u32 s%d, s%d, %d" % (s_xw, s_xw, XB))
    e("s_mul_i32 s%d, s%d, 288" % (s_t1, s_nblk))
    e("s_cmp_ge_u32 s%d, 4" % s_w)
    e("s_cbranch_scc1 L_helper")

    def srd(sd, sp, nbytes):
        e("s_mov_b32 s%d, s%d" % (sd, sp))
        e("s_and_b32 s%d, s%d, 0xffff" % (sd + 1, sp + 1))
        e("s_mov_b32 s%d, %d" % (sd + 2, nbytes))
        e("s_mov_b32 s%d, 0x00020000" % (sd + 3))
    def emit_item(it):
        k = it[0]
        if k == "vm" and it[2].startswith("x") and "x" in dis: return
        if k == "vm" and it[2].startswith("q") and "q" in dis: return
        if k == "vm" and it[2].startswith("st") and "s" in dis: return
        if k in ("s", "v"):
            if len(it) > 2: g.need(*it[2])
            e(it[1])
        elif k == "vm":
            if len(it) > 3: g.need(*it[3])
            g.vm(it[1], it[2])
        elif k == "ds":
            if len(it) > 3: g.need(*it[3])
            g.ds(it[1], it[2])
        else: raise Exception(k)
    def emit_items(items):
        for it in items: emit_item(it)
    def dump_stamps(wsel):
        e("s_memtime s[%d:%d]" % (STAMP0 + 20, STAMP0 + 21))
        e("s_waitcnt vmcnt(0)")
        e("s_memtime s[%d:%d]" % (STAMP0 + 22, STAMP0 + 23))
        e("s_waitcnt lgkmcnt(0)")
        e("s_cmp_lg_u32 s2, 5")
        e("s_cbranch_scc1 L_end")
        e("s_cmp_lg_u32 s%d, %d" % (s_w, wsel))
        e("s_cbranch_scc1 L_end")
        e("s_load_dwordx2 s[4:5], s[0:1], 40")
        e("s_waitcnt lgkmcnt(0)")
        e("s_mov_b32 s6, 256")
        e("s_mov_b32 s7, 0x00020000")
        for i in range(11):
            e("s_sub_u32 s%d, s%d, s%d" % (STAMP0 + 2 + 2 * i, STAMP0 + 2 + 2 * i, STAMP0))
            e("v_mov_b32 v1, s%d" % (STAMP0 + 2 + 2 * i))
            e("v_mov_b32 v2, %d" % (4 * i))
            e("buffer_store_dword v1, v2, s[4:7], 0 offen")

    g.vmq = []; g.lgq = []
    if cfg.get("prio", 1): e("s_setprio %d" % cfg.get("prio", 1))
    e("s_mul_i32 s%d, s%d, 9216" % (s_oo, s_t0))
    e("s_add_u32 s%d, s%d, s%d" % (s_oo, s_oo, s_t1))
    lane, kg, nb, t7, hh = 12, 13, 14, 15, 16
    e("v_and_b32 v%d, 63, v0" % lane)
    e("v_and_b32 v%d, 15, v0" % nb)
    e("v_lshrrev_b32 v%d, 4, v%d" % (kg, lane))
    e("v_lshrrev_b32 v%d, 1, v%d" % (t7, nb))
    e("v_xor_b32 v%d, v%d, v%d" % (t7, kg, t7))
    e("v_lshlrev_b32 v%d, 4, v%d" % (t7, t7))
    e("v_lshl_add_u32 v%d, v%d, 7, v%d" % (m_xr[0], nb, t7))
    e("v_add_u32 v%d, s%d, v%d" % (m_xr[0], s_xw, m_xr[0]))
    e("v_xor_b32 v%d, 64, v%d" % (m_xr[1], m_xr[0]))
    e("v_lshrrev_b32 v%d, 1, v%d" % (hh, nb))
    e("v_and_b32 v%d, 1, v%d" % (t7, nb))
    e("v_lshlrev_b32 v%d, 2, v%d" % (t7, t7))
    e("v_xor_b32 v%d, v%d, v%d" % (hh, hh, t7))
    e("v_xor_b32 v%d, v%d, v%d" % (t7, kg, hh))
    e("v_lshlrev_b32 v%d, 4, v%d" % (t7, t7))
    e("v_lshl_add_u32 v%d, v%d, 7, v%d" % (m_r[0], nb, t7))
    for xx in range(1, 4):
        e("v_xor_b32 v%d, %d, v%d" % (m_r[xx], xx * 32, m_r[0]))
    e("v_mul_u32_u24 v%d, %d, v%d" % (m_ob, 4 * 9216, kg))
    e("v_lshl_add_u32 v%d, v%d, 4, v%d" % (m_oa, nb, m_ob))
    e("v_lshl_add_u32 v%d, v%d, 1, v%d" % (m_ob, nb, m_ob))
    mul72, sh72 = magic(72, 255)
    pa = m_acc
    gq = pa + 8; cp = pa + 9; szo = pa + 10; v_tw = pa + 6
    e("v_mul_u32_u24 v%d, %d, v0" % (gq, mul72))
    e("v_lshrrev_b32 v%d, %d, v%d" % (gq, sh72, gq))
    e("v_mul_u32_u24 v%d, 72, v%d" % (cp, gq))
    e("v_sub_u32 v%d, v0, v%d" % (cp, cp))
    e("v_mul_u32_u24 v%d, 9216, v%d" % (szo, gq))
    e("v_lshl_add_u32 v%d, v%d, 2, v%d" % (szo, cp, szo))
    e("v_mul_u32_u24 v%d, 1152, v%d" % (v_tw, gq))
    e("v_lshl_add_u32 v%d, v%d, 4, v%d" % (v_tw, cp, v_tw))
    e("s_add_u32 s%d, s%d, %d" % (s_t2, s_t1, 3 * 9216))
    e("s_add_u32 s%d, s%d, %d" % (s_t3, s_t1, 6 * 9216))
    e("s_mov_b32 s%d, 0x4b800000" % s_c24)
    e("s_waitcnt lgkmcnt(0)")
    srd(S_O, 12, M * N * 2); srd(S_SC, 8, NG * N * 2); srd(S_Z, 10, NG * N * 2)
    for i, so in enumerate((s_t1, s_t2, s_t3)):
        g.vm("buffer_load_dword v%d, v%d, s[%d:%d], s%d offen" % (pa + i, szo, S_SC, S_SC + 3, so), "sz")
        g.vm("buffer_load_dword v%d, v%d, s[%d:%d], s%d offen" % (pa + 3 + i, szo, S_Z, S_Z + 3, so), "sz")
    sl, sh_, zl, zh = pa + 12, pa + 13, pa + 14, pa + 15
    o4 = pa + 24; tt = pa + 28
    if cfg.get("tlb", 0):
        sh = cfg["tlb"]
        srd(S_X, 4, M * K * 2); srd(S_Q, 6, K * N * 4)
        e("v_lshlrev_b32 v%d, %d, v0" % (pa + 32, sh))
        for (sr, nbytes) in ((S_Q, K * N * 4), (S_X, M * K * 2), (S_O, M * N * 2)):
            nrep = (nbytes + (256 << sh) - 1) // (256 << sh)
            for rp in range(nrep):
                if rp: e("s_mov_b32 s%d, %d" % (s_qs, rp * (256 << sh)))
                g.vm("buffer_load_dword v%d, v%d, s[%d:%d], %s offen" % (pa + 33, pa + 32, sr, sr + 3, ("s%d" % s_qs) if rp else "0"), "tlb")
    if cfg.get("pf", 1) == 1:
        srd(S_X, 4, M * K * 2); srd(S_Q, 6, K * N * 4)
        px = pa + 32; pq = pa + 33; pl = pa + 34; pr = pa + 35; pd = pa + 36
        m18, s18 = magic(18, 36 * 31 + 63)
        e("s_lshr_b32 s%d, s2, 3" % s_qs)
        e("s_lshl_b32 s%d, s%d, 6" % (s_qs + 1, s_qs))
        e("v_add_u32 v%d, s%d, v%d" % (px, s_qs + 1, lane))
        e("v_mul_u32_u24 v%d, 1152, v%d" % (px, px))
        e("s_mul_i32 s%d, s%d, 36" % (s_qs + 1, s_qs))
        e("v_add_u32 v%d, s%d, v%d" % (pl, s_qs + 1, lane))
        e("v_mul_u32_u24 v%d, %d, v%d" % (pr, m18, pl))
        e("v_lshrrev_b32 v%d, %d, v%d" % (pr, s18, pr))
        e("v_mul_u32_u24 v%d, 18, v%d" % (pq, pr))
        e("v_sub_u32 v%d, v%d, v%d" % (pl, pl, pq))
        e("v_mul_u32_u24 v%d, 18432, v%d" % (pq, pr))
        e("v_lshl_add_u32 v%d, v%d, 7, v%d" % (pq, pl, pq))
        e("s_and_b32 s%d, s2, 7" % s_pfq)
        e("s_mul_i32 s%d, s%d, 2304" % (s_pfq, s_pfq))
        e("v_mov_b32 v%d, v%d" % (m_px, px))
        e("v_mov_b32 v%d, v%d" % (m_pq, pq))
        npf = [0]
        def touch(gg, wsel):
            lab = "L_pf_%d" % npf[0]; npf[0] += 1
            e("s_cmp_lg_u32 s%d, %d" % (s_w, wsel))
            e("s_cbranch_scc1 %s" % lab)
            e("buffer_load_dword v%d, v%d, s[%d:%d], 0 offen offset:%d" % (m_pd, m_px, S_X, S_X + 3, gg * 128))
            e("s_add_u32 s%d, s%d, %d" % (s_pfq + 1, s_pfq, gg * 64 * 18432))
            e("buffer_load_dword v%d, v%d, s[%d:%d], s%d offen" % (m_pd, m_pq, S_Q, S_Q + 3, s_pfq + 1))
            g.label(lab)
        g.need(("sz",))
        PFD = cfg.get("pfd", 4)
        for gg in range(2, PFD): touch(gg, gg % 4)
    g.need(("sz",))
    e("v_cmp_gt_u32 vcc, 216, v0")
    e("s_and_saveexec_b64 s[%d:%d], vcc" % (s_sv, s_sv + 1))
    e("s_mov_b64 s[%d:%d], 0" % (s_bad, s_bad + 1))
    for i in range(3):
        e("v_lshlrev_b32 v%d, 16, v%d" % (sl, pa + i))
        e("v_and_b32 v%d, 0xffff0000, v%d" % (sh_, pa + i))
        e("v_lshlrev_b32 v%d, 16, v%d" % (zl, pa + 3 + i))
        e("v_and_b32 v%d, 0xffff0000, v%d" % (zh, pa + 3 + i))
        e("v_mul_f32 v%d, s%d, v%d" % (o4, s_c24, sl))
        e("v_mul_f32_e64 v%d, -v%d, v%d" % (o4 + 1, zl, sl))
        e("v_mul_f32 v%d, s%d, v%d" % (o4 + 2, s_c24, sh_))
        e("v_mul_f32_e64 v%d, -v%d, v%d" % (o4 + 3, zh, sh_))
        g.ds("ds_write_b128 v%d, v[%d:%d] offset:%d" % (v_tw, o4, o4 + 3, TAB + i * 3 * 1152), "tab")
        for (sv, zv) in ((sl, zl), (sh_, zh)):
            e("v_rndne_f32 v%d, v%d" % (tt, zv))
            e("v_cmp_neq_f32 vcc, v%d, v%d" % (tt, zv))
            e("s_or_b64 s[%d:%d], s[%d:%d], vcc" % (s_bad, s_bad + 1, s_bad, s_bad + 1))
            e("v_and_b32 v%d, 0x7fffffff, v%d" % (tt, zv))
            e("v_cmp_lt_u32 vcc, 0x43000000, v%d" % tt)
            e("s_or_b64 s[%d:%d], s[%d:%d], vcc" % (s_bad, s_bad + 1, s_bad, s_bad + 1))
            e("v_and_b32 v%d, 0x7fffffff, v%d" % (tt, sv))
            e("v_cmp_ne_u32 s[%d:%d], 0, v%d" % (s_os, s_os + 1, tt))
            e("v_subrev_u32 v%d, %d, v%d" % (tt, 27 << 23, tt))
            e("v_cmp_le_u32 vcc, %d, v%d" % (200 << 23, tt))
            e("s_and_b64 vcc, vcc, s[%d:%d]" % (s_os, s_os + 1))
            e("s_or_b64 s[%d:%d], s[%d:%d], vcc" % (s_bad, s_bad + 1, s_bad, s_bad + 1))
        g.need((), ("tab",))
    e("s_mov_b64 exec, s[%d:%d]" % (s_sv, s_sv + 1))
    e("s_cmp_lg_u64 s[%d:%d], 0" % (s_bad, s_bad + 1))
    e("s_cselect_b32 s%d, 1, 0" % s_os)
    e("s_lshl_b32 s%d, s%d, 2" % (s_os + 1, s_w))
    e("v_mov_b32 v%d, s%d" % (tt, s_os))
    e("v_mov_b32 v%d, s%d" % (tt + 1, s_os + 1))
    g.ds("ds_write_b32 v%d, v%d offset:%d" % (tt + 1, tt, FLAGS), "tab")
    e("v_mov_b32 v20, 0")
    g.need((), ("tab",))
    e("s_barrier")
    g.ds("ds_read_b128 v[16:19], v20 offset:%d" % FLAGS, "flag")
    g.need((), ("flag",))
    e("v_or_b32 v16, v16, v17")
    e("v_or3_b32 v16, v16, v18, v19")
    e("s_nop 0")
    e("v_readfirstlane_b32 s%d, v16" % s_os)
    e("s_cmp_eq_u32 s%d, 0" % s_os)
    e("s_cbranch_scc1 L_m_fast")
    e("s_barrier")
    e("v_cmp_gt_u32 vcc, 216, v0")
    e("s_and_saveexec_b64 s[%d:%d], vcc" % (s_sv, s_sv + 1))
    for i in range(3):
        e("v_lshlrev_b32 v%d, 16, v%d" % (o4, pa + i))
        e("v_and_b32 v%d, 0xffff0000, v%d" % (o4 + 2, pa + i))
        e("v_lshlrev_b32 v%d, 16, v%d" % (o4 + 1, pa + 3 + i))
        e("v_and_b32 v%d, 0xffff0000, v%d" % (o4 + 3, pa + 3 + i))
        e("v_xor_b32 v%d, 0x80000000, v%d" % (o4 + 1, o4 + 1))
        e("v_xor_b32 v%d, 0x80000000, v%d" % (o4 + 3, o4 + 3))
        g.ds("ds_write_b128 v%d, v[%d:%d] offset:%d" % (v_tw, o4, o4 + 3, TAB + i * 3 * 1152), "tab")
        g.need((), ("tab",))
    e("s_mov_b64 exec, s[%d:%d]" % (s_sv, s_sv + 1))
    e("s_barrier")
    e("s_barrier")
    g.label("L_m_fast")
    def xfrag_reads(gg, s):
        out = []
        for mt in range(4):
            b = a_x + s * 16 + mt * 4
            out.append(("ds", "ds_read_b128 a[%d:%d], v%d offset:%d" % (b, b + 3, m_xr[s], (gg % XR) * XSL + mt * 2048), "xf%d_%d" % (gg, s)))
        return out
    def stores(mt):
        out = []
        for r in range(4):
            tq = m_tmp + r * 4
            for h in range(4):
                out.append(("v", "v_cvt_pk_bf16_f32 v%d, v%d, v%d" % (tq + h, accreg(mt, 2 * h) + r, accreg(mt, 2 * h + 1) + r)))
            out.append(("s", "s_add_u32 s%d, s%d, %d" % (s_os, s_oo, (mt * 16 + r) * 9216)))
            out.append(("vm", "buffer_store_dwordx4 v[%d:%d], v%d, s[%d:%d], s%d offen" % (tq, tq + 3, m_oa, S_O, S_O + 3, s_os), "st"))
        b = accreg(mt, 8)
        for rp in range(2):
            td = m_tmp + 24 + (mt * 2 + rp) % 4
            out.append(("v", "v_cvt_pk_bf16_f32 v%d, v%d, v%d" % (td, b + 2 * rp, b + 2 * rp + 1)))
            out.append(("s", "s_add_u32 s%d, s%d, %d" % (s_os, s_oo, (mt * 16 + 2 * rp) * 9216)))
            out.append(("vm", "buffer_store_short v%d, v%d, s[%d:%d], s%d offen offset:256" % (td, m_ob, S_O, S_O + 3, s_os), "st"))
            out.append(("s", "s_add_u32 s%d, s%d, %d" % (s_os, s_oo, (mt * 16 + 2 * rp + 1) * 9216)))
            out.append(("vm", "buffer_store_short_d16_hi v%d, v%d, s[%d:%d], s%d offen offset:256" % (td, m_ob, S_O, S_O + 3, s_os), "st"))
        return out
    LS = cfg.get("lastsplit", 2)
    mtsets = {1: [(0, 1, 2, 3)], 2: [(0, 1), (2, 3)], 4: [(0,), (1,), (2,), (3,)]}[LS]
    frags = [(j, s, t, (0, 1, 2, 3)) for j in range(NG - 1) for s in range(2) for t in range(T)]
    frags += [(NG - 1, s, t, ms) for ms in mtsets for s in range(2) for t in range(T)]
    def frag_read(fi):
        j, s, t, _ = frags[fi]
        b = a_fr + (fi % FR) * 4
        xv = (2 * s) ^ ((t >> 2) if t < 8 else 0)
        return ("ds", "ds_read_b128 a[%d:%d], v%d offset:%d" % (b, b + 3, m_r[xv], WB + (j % 2) * SLOT + t * 2048), "f%d" % fi)
    PF = FR - 1
    emit_items(xfrag_reads(0, 0))
    nfr = 0
    for fi in range(PF):
        emit_item(frag_read(fi)); nfr += 1
    P = []; ST = []; stdelay = 0
    prevj = -1; fl = 0; prevms = None
    for fi, (j, s, t, ms) in enumerate(frags):
        if j != prevj:
            emit_items(P); P = []
            if stamp: e("s_memtime s[%d:%d]" % (STAMP0 + 2 + 2 * j, STAMP0 + 3 + 2 * j))
            P = xfrag_reads(j, 1)
            fl = 0; prevj = j
            if cfg.get("pf", 1) == 1 and j + cfg.get("pfd", 4) < NG: touch(j + cfg.get("pfd", 4), j % 4)
        if j == NG - 1 and prevms is not None and ms != prevms:
            for mt in prevms: ST += stores(mt)
            stdelay = 6
        prevms = ms if j == NG - 1 else None
        fb = a_fr + (fi % FR) * 4
        if fl == BARF and j + 1 < NG:
            assert nfr >= (j + 1) * 2 * T, (nfr, j)
            g.need((), ("f%d" % ((j + 1) * 2 * T - 1),))
            e("s_barrier")
            P += xfrag_reads(j + 1, 0)
        for mt in ms:
            ab = accreg(mt, t)
            accs = "v[%d:%d]" % (ab, ab + 3)
            g.need((), ("f%d" % fi, "xf%d_%d" % (j, s)))
            csrc = "0" if (j == 0 and s == 0) else accs
            xb_ = a_x + s * 16 + mt * 4
            e("v_mfma_f32_16x16x32_bf16 %s, a[%d:%d], a[%d:%d], %s" % (accs, xb_, xb_ + 3, fb, fb + 3, csrc))
            cnt = 0
            if nfr < len(frags) and nfr <= fi + PF and (frags[nfr][0] == j or fl >= BARF):
                emit_item(frag_read(nfr)); nfr += 1; cnt += 1
            while P and cnt < 1:
                emit_item(P.pop(0)); cnt += 1
            if stdelay: stdelay -= 1
            else:
                while ST and (cnt < 2 or ST[0][0] == "s"):
                    it = ST.pop(0); emit_item(it); cnt += (it[0] != "s")
        fl += 1
    emit_items(P)
    emit_items(ST)
    e("s_nop 7")
    e("s_nop 1")
    for mt in prevms: emit_items(stores(mt))
    if stamp: dump_stamps(cfg.get("stw", 0))
    e("s_endpgm")

    g.label("L_helper")
    g.vmq = []; g.lgq = []
    e("s_mul_i32 s%d, s%d, 1152" % (s_xo, s_t0))
    for rb in range(1, 8):
        e("s_add_u32 s%d, s%d, %d" % (s_xo + rb, s_xo, rb * 8 * 1152))
    e("s_mul_i32 s%d, s%d, 576" % (s_q0, s_nblk))
    e("s_mov_b32 s%d, 0x4b800000" % s_c24)
    lane = h_tmp + 1; kg = h_tmp + 2; kb = h_tmp + 4; nb = h_tmp + 5; t7 = h_tmp + 7
    k8 = h_tmp + 8; nq_ = h_tmp + 9; hh = h_tmp + 10; ii = h_tmp + 11; t12 = h_tmp + 12; tl = h_tl
    e("v_and_b32 v%d, 63, v0" % lane)
    e("v_and_b32 v%d, 255, v0" % tl)
    e("v_lshrrev_b32 v%d, 4, v%d" % (kb, tl))
    e("v_and_b32 v%d, 15, v0" % nb)
    e("v_lshrrev_b32 v%d, 4, v%d" % (kg, lane))
    e("v_lshrrev_b32 v%d, 3, v%d" % (t7, lane))
    e("v_mul_u32_u24 v%d, 1152, v%d" % (h_xd[0], t7))
    e("v_and_b32 v%d, 7, v%d" % (t7, lane))
    e("v_xor_b32 v%d, v%d, v%d" % (t7, t7, kg))
    e("v_lshl_add_u32 v%d, v%d, 4, v%d" % (h_xd[0], t7, h_xd[0]))
    e("v_xor_b32 v%d, 64, v%d" % (h_xd[1], h_xd[0]))
    e("v_mul_u32_u24 v%d, %d, v%d" % (h_qb, 4 * 18432, kb))
    e("v_lshl_add_u32 v%d, v%d, 2, v%d" % (h_qb, nb, h_qb))
    e("v_add_u32 v%d, 512, v%d" % (h_qb, h_qb))
    e("v_lshrrev_b32 v%d, 5, v%d" % (k8, tl))
    e("v_and_b32 v%d, 31, v0" % nq_)
    e("v_mul_u32_u24 v%d, %d, v%d" % (h_qa, 8 * 18432, k8))
    e("v_lshl_add_u32 v%d, v%d, 4, v%d" % (h_qa, nq_, h_qa))
    pa = h_pa
    e("s_waitcnt lgkmcnt(0)")
    srd(S_X, 4, M * K * 2); srd(S_Q, 6, K * N * 4); srd(S_SC, 8, NG * N * 2); srd(S_Z, 10, NG * N * 2)
    def qreg(slot, r, ee):
        b = h_st + slot * 36
        return b + r * 4 + ee if ee < 4 else b + 32 + r
    def load_q(j):
        slot = j % NS
        out = []
        for r in range(8):
            b = qreg(slot, r, 0)
            out.append(("s", "s_add_u32 s%d, s%d, %d" % (s_qs, s_q0, (j * 64 + r) * 18432)))
            out.append(("vm", "buffer_load_dwordx4 v[%d:%d], v%d, s[%d:%d], s%d offen" % (b, b + 3, h_qa, S_Q, S_Q + 3, s_qs), "q%d" % j))
        for r in range(4):
            out.append(("s", "s_add_u32 s%d, s%d, %d" % (s_qs + 1, s_q0, (j * 64 + r) * 18432)))
            out.append(("vm", "buffer_load_dword v%d, v%d, s[%d:%d], s%d offen" % (qreg(slot, r, 4), h_qb, S_Q, S_Q + 3, s_qs + 1), "q%d" % j))
        return out
    def dma_x(gg):
        res = []
        for rb in range(8):
            c = (gg % XR) * XSL + rb * 1024 - gg * 128
            if c >= 0: res.append(("s", "s_add_u32 m0, s%d, %d" % (s_xw, c)))
            else: res.append(("s", "s_sub_u32 m0, s%d, %d" % (s_xw, -c)))
            res.append(("s", "s_nop 0"))
            res.append(("vm", "buffer_load_dwordx4 v%d, s[%d:%d], s%d offen offset:%d lds" % (h_xd[rb & 1], S_X, S_X + 3, s_xo + rb, gg * 128), "x%d" % gg))
        return res
    d0 = pa + 16
    e("v_lshlrev_b32 v%d, 3, v%d" % (t7, nq_))
    e("v_lshl_add_u32 v%d, v%d, 1, 0" % (t12, nb))
    g.vm("buffer_load_dwordx2 v[%d:%d], v%d, s[%d:%d], s%d offen" % (d0, d0 + 1, t7, S_SC, S_SC + 3, s_t1), "d0")
    g.vm("buffer_load_dwordx2 v[%d:%d], v%d, s[%d:%d], s%d offen" % (d0 + 2, d0 + 3, t7, S_Z, S_Z + 3, s_t1), "d0")
    g.vm("buffer_load_ushort v%d, v%d, s[%d:%d], s%d offen offset:256" % (d0 + 4, t12, S_SC, S_SC + 3, s_t1), "d0")
    g.vm("buffer_load_ushort v%d, v%d, s[%d:%d], s%d offen offset:256" % (d0 + 5, t12, S_Z, S_Z + 3, s_t1), "d0")
    emit_items(load_q(0)); nq = 1
    emit_items(dma_x(0)); nx = 1
    if cfg.get("pf", 1) == 3:
        emit_items(load_q(1)); nq = 2
        emit_items(dma_x(1)); nx = 2
        px = pa + 0; pq = pa + 1; pl = pa + 2; pr = pa + 3; pd = pa + 4
        m18, s18 = magic(18, 36 * 31 + 63)
        e("s_lshr_b32 s%d, s2, 3" % s_t2)
        e("s_lshl_b32 s%d, s%d, 6" % (s_t3, s_t2))
        e("v_add_u32 v%d, s%d, v%d" % (px, s_t3, lane))
        e("v_mul_u32_u24 v%d, 1152, v%d" % (px, px))
        e("s_mul_i32 s%d, s%d, 36" % (s_t3, s_t2))
        e("v_add_u32 v%d, s%d, v%d" % (pl, s_t3, lane))
        e("v_mul_u32_u24 v%d, %d, v%d" % (pr, m18, pl))
        e("v_lshrrev_b32 v%d, %d, v%d" % (pr, s18, pr))
        e("v_mul_u32_u24 v%d, 18, v%d" % (pq, pr))
        e("v_sub_u32 v%d, v%d, v%d" % (pl, pl, pq))
        e("v_mul_u32_u24 v%d, 18432, v%d" % (pq, pr))
        e("v_lshl_add_u32 v%d, v%d, 7, v%d" % (pq, pl, pq))
        e("s_and_b32 s%d, s2, 7" % s_t2)
        e("s_mul_i32 s%d, s%d, 2304" % (s_t2, s_t2))
        e("s_and_b32 s%d, s%d, 3" % (s_t3, s_w))
        e("s_mul_i32 s%d, s%d, %d" % (s_os, s_t3, 64 * 18432))
        e("s_add_u32 s%d, s%d, s%d" % (s_t2, s_t2, s_os))
        e("s_lshl_b32 s%d, s%d, 7" % (s_t3, s_t3))
        for rep in range(2):
            g0 = 2 + 4 * rep
            g.vm("buffer_load_dword v%d, v%d, s[%d:%d], s%d offen offset:%d" % (pd, px, S_X, S_X + 3, s_t3, g0 * 128), "pf")
            e("s_add_u32 s%d, s%d, %d" % (s_os, s_t2, g0 * 64 * 18432))
            g.vm("buffer_load_dword v%d, v%d, s[%d:%d], s%d offen" % (pd + 1, pq, S_Q, S_Q + 3, s_os), "pf")
    e("v_lshrrev_b32 v%d, 1, v%d" % (hh, nb))
    e("v_and_b32 v%d, 1, v%d" % (t7, nb))
    e("v_lshlrev_b32 v%d, 2, v%d" % (t7, t7))
    e("v_xor_b32 v%d, v%d, v%d" % (hh, hh, t7))
    e("v_lshrrev_b32 v%d, 1, v%d" % (t7, kb))
    e("v_xor_b32 v%d, v%d, v%d" % (t7, t7, hh))
    e("v_lshlrev_b32 v%d, 4, v%d" % (t7, t7))
    e("v_lshl_add_u32 v%d, v%d, 7, v%d" % (h_wb, nb, t7))
    e("v_and_b32 v%d, 1, v%d" % (t7, kb))
    e("v_lshl_add_u32 v%d, v%d, 3, v%d" % (h_wb, t7, h_wb))
    e("v_lshrrev_b32 v%d, 1, v%d" % (ii, nq_))
    e("v_lshrrev_b32 v%d, 1, v%d" % (hh, ii))
    e("v_and_b32 v%d, 1, v%d" % (t7, ii))
    e("v_lshlrev_b32 v%d, 2, v%d" % (t7, t7))
    e("v_xor_b32 v%d, v%d, v%d" % (hh, hh, t7))
    e("v_and_b32 v%d, 1, v%d" % (t12, nq_))
    e("v_lshlrev_b32 v%d, 1, v%d" % (t7, t12))
    e("v_xor_b32 v%d, v%d, v%d" % (hh, hh, t7))
    e("v_xor_b32 v%d, v%d, v%d" % (hh, hh, k8))
    e("v_lshlrev_b32 v%d, 4, v%d" % (hh, hh))
    e("v_lshl_add_u32 v%d, v%d, 6, v%d" % (t7, t12, ii))
    e("v_lshl_add_u32 v%d, v%d, 7, v%d" % (h_wa, t7, hh))
    e("v_lshlrev_b32 v%d, 5, v%d" % (h_sa, nq_))
    e("v_lshlrev_b32 v%d, 3, v%d" % (h_sb, nb))
    sl, sh_, zl, zh = pa + 12, pa + 13, pa + 14, pa + 15
    o4 = pa + 24; tt = pa + 28
    def scale_reads(j):
        out = []
        off0 = TAB + j * 1152
        for h in range(2):
            out.append(("ds", "ds_read_b128 v[%d:%d], v%d offset:%d" % (h_sc + 4 * h, h_sc + 4 * h + 3, h_sa, off0 + 16 * h), "sc%d" % j))
        out.append(("ds", "ds_read_b64 v[%d:%d], v%d offset:%d" % (h_sc + 8, h_sc + 9, h_sb, off0 + 1024), "sc%d" % j))
        return out
    def dq_elem(generic, f, q, c1, c0, dep):
        if not generic:
            return [("v", "v_fma_mix_f32 v%d, v%d, v%d, v%d op_sel_hi:[1,0,0]" % (f, q, c1, c0)) + dep]
        return [("v", "v_cvt_f32_i32 v%d, v%d" % (f, q)) + dep,
                ("v", "v_cvt_pk_bf16_f32 v%d, 0, v%d" % (f, f)),
                ("v", "v_add_f32 v%d, v%d, v%d" % (f, f, c0)),
                ("v", "v_cvt_pk_bf16_f32 v%d, 0, v%d" % (f, f)),
                ("v", "v_mul_f32 v%d, v%d, v%d" % (f, f, c1))]
    def dequant(j, generic):
        slot = j % NS
        out = []; first = True; pend = []
        for ee in range(5):
            f = h_tmp + (ee % 2) * 8
            c1 = h_sc + 2 * ee; c0 = c1 + 1
            nr = 8 if ee < 4 else 4
            for r in range(nr):
                dep = ((("q%d" % j,), ("sc%d" % j,)),) if first else ()
                first = False
                out += dq_elem(generic, f + r, qreg(slot, r, ee), c1, c0, dep)
                if r == 1 and pend: out.append(pend.pop(0))
            for h in range(nr // 2):
                out.append(("v", "v_cvt_pk_bf16_f32 v%d, v%d, v%d" % (f + h, f + 2 * h, f + 2 * h + 1)))
            if ee < 4:
                pend.append(("ds", "ds_write_b128 v%d, v[%d:%d] offset:%d" % (h_wa, f, f + 3, WB + (j % 2) * SLOT + ee * 2048), "w%d" % j))
            else:
                pend.append(("ds", "ds_write_b64 v%d, v[%d:%d] offset:%d" % (h_wb, f, f + 1, WB + (j % 2) * SLOT + 8 * 2048), "w%d" % j))
        out += pend
        return out
    g.need(("d0",))
    for ee in range(5):
        if ee < 4:
            sp = d0 + ee // 2; zp = d0 + 2 + ee // 2
            if ee % 2 == 0:
                e("v_lshlrev_b32 v%d, 16, v%d" % (sl, sp)); e("v_lshlrev_b32 v%d, 16, v%d" % (zl, zp))
            else:
                e("v_and_b32 v%d, 0xffff0000, v%d" % (sl, sp)); e("v_and_b32 v%d, 0xffff0000, v%d" % (zl, zp))
        else:
            e("v_lshlrev_b32 v%d, 16, v%d" % (sl, d0 + 4)); e("v_lshlrev_b32 v%d, 16, v%d" % (zl, d0 + 5))
        e("v_mul_f32 v%d, s%d, v%d" % (h_sc + 2 * ee, s_c24, sl))
        e("v_mul_f32_e64 v%d, -v%d, v%d" % (h_sc + 2 * ee + 1, zl, sl))
    emit_items(dequant(0, False))
    g.need(("x0",), ("w0",))
    e("s_barrier")
    e("v_mov_b32 v%d, 0" % tt)
    g.ds("ds_read_b128 v[%d:%d], v%d offset:%d" % (o4, o4 + 3, tt, FLAGS), "flag")
    if nq < 2: emit_items(load_q(1)); nq = 2
    if nx < 2: emit_items(dma_x(1)); nx = 2
    g.need((), ("flag",))
    e("v_or_b32 v%d, v%d, v%d" % (o4, o4, o4 + 1))
    e("v_or3_b32 v%d, v%d, v%d, v%d" % (o4, o4, o4 + 2, o4 + 3))
    e("s_nop 0")
    e("v_readfirstlane_b32 s%d, v%d" % (s_os, o4))
    e("s_cmp_lg_u32 s%d, 0" % s_os)
    e("s_cbranch_scc1 L_h_generic")
    saved = (list(g.vmq), list(g.lgq), nq, nx)
    def hbody(generic):
        g.vmq, g.lgq = list(saved[0]), list(saved[1])
        nq, nx = saved[2], saved[3]
        if generic:
            e("s_barrier")
            e("s_barrier")
            emit_items(scale_reads(0))
            emit_items(dequant(0, True))
            g.need((), ("w0",))
            e("s_barrier")
        emit_items(scale_reads(1))
        V = []
        for j in range(NG - 1):
            if stamp and not generic: e("s_memtime s[%d:%d]" % (STAMP0 + 2 + 2 * j, STAMP0 + 3 + 2 * j))
            D = dequant(j + 1, generic)
            while True:
                added = False
                if nq < NG and nq <= j + NS and nq <= nx + 0:
                    V += load_q(nq); nq += 1; added = True
                elif nx < NG and nx <= j + 2:
                    V += dma_x(nx); nx += 1; added = True
                elif nq < NG and nq <= j + NS:
                    V += load_q(nq); nq += 1; added = True
                if not added: break
            per = cfg.get("ratio", 3) * (5 if generic else 1)
            while any(it[0] == "vm" and it[2] == "q%d" % (j + 1) for it in V):
                emit_item(V.pop(0))
            while D:
                while V and V[0][0] == "s": emit_item(V.pop(0))
                if V: emit_item(V.pop(0))
                for _ in range(per):
                    if D: emit_item(D.pop(0))
            while any(it[0] == "vm" and it[2] == "x%d" % (j + 1) for it in V):
                emit_item(V.pop(0))
            if j == NG - 2: emit_items(V); V = []
            if j + 2 < NG: emit_items(scale_reads(j + 2))
            g.need(("x%d" % (j + 1),), ("w%d" % (j + 1),))
            e("s_barrier")
        if stamp and not generic: dump_stamps(cfg.get("stw", 0))
        e("s_endpgm")
    hbody(False)
    g.label("L_h_generic")
    hbody(True)
    g.label("L_end")
    e("s_endpgm")
    tail = ['.section .rodata,"a"', ".p2align 6", ".amdhsa_kernel %s" % KNAME,
            "  .amdhsa_next_free_vgpr %d" % (ACCOFF + NAG), "  .amdhsa_next_free_sgpr 102", "  .amdhsa_accum_offset %d" % ACCOFF,
            "  .amdhsa_group_segment_fixed_size 0", "  .amdhsa_kernarg_size 56", "  .amdhsa_user_sgpr_count 2",
            "  .amdhsa_user_sgpr_kernarg_segment_ptr 1", "  .amdhsa_system_sgpr_workgroup_id_x 1",
            "  .amdhsa_float_denorm_mode_32 3", "  .amdhsa_float_denorm_mode_16_64 3", ".end_amdhsa_kernel"]
    return "\n".join(hdr + g.L + tail) + "\n", ACCOFF + NAG, LDS_BYTES

if __name__ == "__main__":
    ap = argparse.ArgumentParser()
    ap.add_argument("--ns", type=int, default=3)
    ap.add_argument("--xr", type=int, default=3)
    ap.add_argument("--fr", type=int, default=6)
    ap.add_argument("--barf", type=int, default=14)
    ap.add_argument("--prio", type=int, default=1)
    ap.add_argument("--dis", default="")
    ap.add_argument("--pf", type=int, default=1)
    ap.add_argument("--tlb", type=int, default=0)
    ap.add_argument("--pfd", type=int, default=4)
    ap.add_argument("--ratio", type=int, default=3)
    ap.add_argument("--lastsplit", type=int, default=2)
    ap.add_argument("--stamp", type=int, default=0)
    ap.add_argument("--stw", type=int, default=0)
    ap.add_argument("-o", default="standalone__weight_only_int_quip_2__prompt.s")
    a = ap.parse_args()
    cfg = dict(ns=a.ns, xr=a.xr, fr=a.fr, barf=a.barf, prio=a.prio, dis=a.dis, pf=a.pf, tlb=a.tlb, pfd=a.pfd, ratio=a.ratio, lastsplit=a.lastsplit, stamp=a.stamp, stw=a.stw)
    s, nvg, lds = build(cfg)
    open(a.o, "w").write(s)
    print("regs", nvg, "LDS", lds, "lines", s.count("\n"))
```

```python
import sys, argparse

M, K, N = 2048, 576, 4608
NG = 9
KNAME = "standalone__weight_only_int_quip_2__prompt_kernel"

class Gen:
    def __init__(self):
        self.L = []; self.vmq = []; self.lgq = []
    def e(self, s): self.L.append("    " + s)
    def label(self, s): self.L.append(s + ":")
    def vm(self, s, tag):
        self.e(s); self.vmq.append(tag)
        assert len(self.vmq) <= 62, "too many VMEM outstanding: %d" % len(self.vmq)
    def ds(self, s, tag):
        self.e(s); self.lgq.append(tag)
    def need(self, vmtags=(), lgtags=()):
        w = []
        nv = None
        for t in vmtags:
            idx = [i for i, x in enumerate(self.vmq) if x == t]
            if idx:
                n = len(self.vmq) - 1 - idx[-1]
                nv = n if nv is None else min(nv, n)
        if nv is not None:
            self.vmq = self.vmq[len(self.vmq) - nv:] if nv else []
            w.append("vmcnt(%d)" % nv)
        nl = None
        for t in lgtags:
            idx = [i for i, x in enumerate(self.lgq) if x == t]
            if idx:
                n = len(self.lgq) - 1 - idx[-1]
                nl = n if nl is None else min(nl, n)
        if nl is not None:
            nl = min(nl, 15)
            self.lgq = self.lgq[len(self.lgq) - nl:] if nl else []
            w.append("lgkmcnt(%d)" % nl)
        if w: self.e("s_waitcnt " + " ".join(w))

def magic(d, maxv):
    for sh in range(8, 24):
        mul = ((1 << sh) + d - 1) // d
        if all(((v * mul) >> sh) == v // d for v in range(maxv + 1)):
            assert maxv * mul < (1 << 32) and mul < (1 << 24)
            return mul, sh
    raise Exception("no magic")

def build(cfg):
    NS = cfg["ns"]; XR = cfg["xr"]; FR = cfg["fr"]; BARF = cfg["barf"]
    T = 9
    SLOT = T * 2048
    WB = 0
    TAB = 2 * SLOT
    FLAGS = TAB + NG * 144 * 8
    XB = (FLAGS + 64 + 1023) // 1024 * 1024
    XSL = 8192
    LDS_BYTES = XB + 4 * XR * XSL
    assert LDS_BYTES <= 163840, LDS_BYTES
    ACCOFF = 200
    m_r = [1, 2, 3, 4]; m_xr = [5, 6]; m_oa = 7; m_ob = 8
    m_px, m_pq, m_pd = 9, 10, 11
    m_tmp = 12
    m_acc = 48
    def accreg(mt, t): return m_acc + (t * 4 + mt) * 4
    a_x = 0; a_fr = 32
    NAG = 32 + 4 * FR
    assert ACCOFF + NAG <= 256
    h_qa, h_qb, h_wa, h_wb, h_sa, h_sb = 1, 2, 3, 4, 5, 6
    h_xd = [7, 8]
    h_tl = 9
    h_tmp = 12
    h_sc = 28
    h_pa = 40
    h_st = 72 if NS <= 3 else 56
    if NS > 3: h_pa = 40
    assert h_st + NS * 36 <= ACCOFF, (h_st, NS)

    g = Gen(); e = g.e
    hdr = ["; W4 dequant GEMM v5 (4 MFMA + 4 helper waves), generated by gen/gen9.py cfg=%s" % (cfg,),
           "; @launch grid=(256,1,1) block=(512,1,1) lds=%d" % LDS_BYTES,
           '.amdgcn_target "amdgcn-amd-amdhsa--gfx950"', ".text", ".globl %s" % KNAME, ".p2align 8",
           ".type %s,@function" % KNAME, "%s:" % KNAME]
    S_X, S_Q, S_SC, S_Z, S_O = 16, 20, 24, 28, 32
    s_w = 36; s_nblk = 37; s_mblk = 38; s_xw = 39
    s_xo = 40
    s_oo = 48; s_q0 = 49
    s_t0, s_t1, s_t2, s_t3 = 50, 51, 52, 53
    s_qs = 54; s_os = 58
    s_bad = 60; s_sv = 62; s_c24 = 64; s_pfq = 44
    STAMP0 = 66
    stamp = cfg.get("stamp", 0)
    dis = cfg.get("dis", "")
    if stamp: e("s_memtime s[%d:%d]" % (STAMP0, STAMP0 + 1))
    e("s_cmp_ge_u32 s2, 256")
    e("s_cbranch_scc1 L_end")
    e("s_load_dwordx4 s[4:7], s[0:1], 0")
    e("s_load_dwordx4 s[8:11], s[0:1], 16")
    e("s_load_dwordx2 s[12:13], s[0:1], 32")
    e("v_lshrrev_b32 v12, 6, v0")
    e("s_and_b32 s%d, s2, 7" % s_t0)
    e("s_lshr_b32 s%d, s2, 3" % s_t1)
    e("v_readfirstlane_b32 s%d, v12" % s_w)
    e("s_and_b32 s%d, s%d, 3" % (s_t2, s_t1))
    e("s_lshl_b32 s%d, s%d, 2" % (s_nblk, s_t0))
    e("s_add_u32 s%d, s%d, s%d" % (s_nblk, s_nblk, s_t2))
    e("s_lshr_b32 s%d, s%d, 2" % (s_mblk, s_t1))
    e("s_lshl_b32 s%d, s%d, 8" % (s_t0, s_mblk))
    e("s_and_b32 s%d, s%d, 3" % (s_t3, s_w))
    e("s_lshl_b32 s%d, s%d, 6" % (s_t1, s_t3))
    e("s_add_u32 s%d, s%d, s%d" % (s_t0, s_t0, s_t1))
    e("s_mul_i32 s%d, s%d, %d" % (s_xw, s_t3, XR * XSL))
    e("s_add_u32 s%d, s%d, %d" % (s_xw, s_xw, XB))
    e("s_mul_i32 s%d, s%d, 288" % (s_t1, s_nblk))
    e("s_cmp_ge_u32 s%d, 4" % s_w)
    e("s_cbranch_scc1 L_helper")

    def srd(sd, sp, nbytes):
        e("s_mov_b32 s%d, s%d" % (sd, sp))
        e("s_and_b32 s%d, s%d, 0xffff" % (sd + 1, sp + 1))
        e("s_mov_b32 s%d, %d" % (sd + 2, nbytes))
        e("s_mov_b32 s%d, 0x00020000" % (sd + 3))
    def emit_item(it):
        k = it[0]
        if k == "vm" and it[2].startswith("x") and "x" in dis: return
        if k == "vm" and it[2].startswith("q") and "q" in dis: return
        if k == "vm" and it[2].startswith("st") and "s" in dis: return
        if k in ("s", "v"):
            if len(it) > 2: g.need(*it[2])
            e(it[1])
        elif k == "vm":
            if len(it) > 3: g.need(*it[3])
            g.vm(it[1], it[2])
        elif k == "ds":
            if len(it) > 3: g.need(*it[3])
            g.ds(it[1], it[2])
        else: raise Exception(k)
    def emit_items(items):
        for it in items: emit_item(it)
    def dump_stamps(wsel):
        if stamp == 1:
            e("s_memtime s[%d:%d]" % (STAMP0 + 20, STAMP0 + 21))
            e("s_waitcnt vmcnt(0)")
            e("s_memtime s[%d:%d]" % (STAMP0 + 22, STAMP0 + 23))
        e("s_waitcnt lgkmcnt(0)")
        e("s_cmp_lg_u32 s2, 5")
        e("s_cbranch_scc1 L_end")
        e("s_cmp_lg_u32 s%d, %d" % (s_w, wsel))
        e("s_cbranch_scc1 L_end")
        e("s_load_dwordx2 s[4:5], s[0:1], 40")
        e("s_waitcnt lgkmcnt(0)")
        e("s_mov_b32 s6, 256")
        e("s_mov_b32 s7, 0x00020000")
        for i in range(11):
            e("s_sub_u32 s%d, s%d, s%d" % (STAMP0 + 2 + 2 * i, STAMP0 + 2 + 2 * i, STAMP0))
            e("v_mov_b32 v1, s%d" % (STAMP0 + 2 + 2 * i))
            e("v_mov_b32 v2, %d" % (4 * i))
            e("buffer_store_dword v1, v2, s[4:7], 0 offen")

    g.vmq = []; g.lgq = []
    if cfg.get("prio", 1): e("s_setprio %d" % cfg.get("prio", 1))
    e("s_mul_i32 s%d, s%d, 9216" % (s_oo, s_t0))
    e("s_add_u32 s%d, s%d, s%d" % (s_oo, s_oo, s_t1))
    lane, kg, nb, t7, hh = 12, 13, 14, 15, 16
    e("v_and_b32 v%d, 63, v0" % lane)
    e("v_and_b32 v%d, 15, v0" % nb)
    e("v_lshrrev_b32 v%d, 4, v%d" % (kg, lane))
    e("v_lshrrev_b32 v%d, 1, v%d" % (t7, nb))
    e("v_xor_b32 v%d, v%d, v%d" % (t7, kg, t7))
    e("v_lshlrev_b32 v%d, 4, v%d" % (t7, t7))
    e("v_lshl_add_u32 v%d, v%d, 7, v%d" % (m_xr[0], nb, t7))
    e("v_add_u32 v%d, s%d, v%d" % (m_xr[0], s_xw, m_xr[0]))
    e("v_xor_b32 v%d, 64, v%d" % (m_xr[1], m_xr[0]))
    e("v_lshrrev_b32 v%d, 1, v%d" % (hh, nb))
    e("v_and_b32 v%d, 1, v%d" % (t7, nb))
    e("v_lshlrev_b32 v%d, 2, v%d" % (t7, t7))
    e("v_xor_b32 v%d, v%d, v%d" % (hh, hh, t7))
    e("v_xor_b32 v%d, v%d, v%d" % (t7, kg, hh))
    e("v_lshlrev_b32 v%d, 4, v%d" % (t7, t7))
    e("v_lshl_add_u32 v%d, v%d, 7, v%d" % (m_r[0], nb, t7))
    for xx in range(1, 4):
        e("v_xor_b32 v%d, %d, v%d" % (m_r[xx], xx * 32, m_r[0]))
    e("v_mul_u32_u24 v%d, %d, v%d" % (m_ob, 4 * 9216, kg))
    e("v_lshl_add_u32 v%d, v%d, 4, v%d" % (m_oa, nb, m_ob))
    e("v_lshl_add_u32 v%d, v%d, 1, v%d" % (m_ob, nb, m_ob))
    mul72, sh72 = magic(72, 255)
    pa = m_acc
    gq = pa + 8; cp = pa + 9; szo = pa + 10; v_tw = pa + 6
    e("v_mul_u32_u24 v%d, %d, v0" % (gq, mul72))
    e("v_lshrrev_b32 v%d, %d, v%d" % (gq, sh72, gq))
    e("v_mul_u32_u24 v%d, 72, v%d" % (cp, gq))
    e("v_sub_u32 v%d, v0, v%d" % (cp, cp))
    e("v_mul_u32_u24 v%d, 9216, v%d" % (szo, gq))
    e("v_lshl_add_u32 v%d, v%d, 2, v%d" % (szo, cp, szo))
    e("v_mul_u32_u24 v%d, 1152, v%d" % (v_tw, gq))
    e("v_lshl_add_u32 v%d, v%d, 4, v%d" % (v_tw, cp, v_tw))
    e("s_add_u32 s%d, s%d, %d" % (s_t2, s_t1, 3 * 9216))
    e("s_add_u32 s%d, s%d, %d" % (s_t3, s_t1, 6 * 9216))
    e("s_mov_b32 s%d, 0x4b800000" % s_c24)
    e("s_waitcnt lgkmcnt(0)")
    srd(S_O, 12, M * N * 2); srd(S_SC, 8, NG * N * 2); srd(S_Z, 10, NG * N * 2)
    for i, so in enumerate((s_t1, s_t2, s_t3)):
        g.vm("buffer_load_dword v%d, v%d, s[%d:%d], s%d offen" % (pa + i, szo, S_SC, S_SC + 3, so), "sz")
        g.vm("buffer_load_dword v%d, v%d, s[%d:%d], s%d offen" % (pa + 3 + i, szo, S_Z, S_Z + 3, so), "sz")
    sl, sh_, zl, zh = pa + 12, pa + 13, pa + 14, pa + 15
    o4 = pa + 24; tt = pa + 28
    if cfg.get("tlb", 0):
        sh = cfg["tlb"]
        srd(S_X, 4, M * K * 2); srd(S_Q, 6, K * N * 4)
        e("v_lshlrev_b32 v%d, %d, v0" % (pa + 32, sh))
        for (sr, nbytes) in ((S_Q, K * N * 4), (S_X, M * K * 2), (S_O, M * N * 2)):
            nrep = (nbytes + (256 << sh) - 1) // (256 << sh)
            for rp in range(nrep):
                if rp: e("s_mov_b32 s%d, %d" % (s_qs, rp * (256 << sh)))
                g.vm("buffer_load_dword v%d, v%d, s[%d:%d], %s offen" % (pa + 33, pa + 32, sr, sr + 3, ("s%d" % s_qs) if rp else "0"), "tlb")
    if cfg.get("pf", 1) == 1:
        srd(S_X, 4, M * K * 2); srd(S_Q, 6, K * N * 4)
        px = pa + 32; pq = pa + 33; pl = pa + 34; pr = pa + 35; pd = pa + 36
        m18, s18 = magic(18, 36 * 31 + 63)
        e("s_lshr_b32 s%d, s2, 3" % s_qs)
        e("s_lshl_b32 s%d, s%d, 6" % (s_qs + 1, s_qs))
        e("v_add_u32 v%d, s%d, v%d" % (px, s_qs + 1, lane))
        e("v_mul_u32_u24 v%d, 1152, v%d" % (px, px))
        e("s_mul_i32 s%d, s%d, 36" % (s_qs + 1, s_qs))
        e("v_add_u32 v%d, s%d, v%d" % (pl, s_qs + 1, lane))
        e("v_mul_u32_u24 v%d, %d, v%d" % (pr, m18, pl))
        e("v_lshrrev_b32 v%d, %d, v%d" % (pr, s18, pr))
        e("v_mul_u32_u24 v%d, 18, v%d" % (pq, pr))
        e("v_sub_u32 v%d, v%d, v%d" % (pl, pl, pq))
        e("v_mul_u32_u24 v%d, 18432, v%d" % (pq, pr))
        e("v_lshl_add_u32 v%d, v%d, 7, v%d" % (pq, pl, pq))
        e("s_and_b32 s%d, s2, 7" % s_pfq)
        e("s_mul_i32 s%d, s%d, 2304" % (s_pfq, s_pfq))
        e("v_mov_b32 v%d, v%d" % (m_px, px))
        e("v_mov_b32 v%d, v%d" % (m_pq, pq))
        npf = [0]
        def touch(gg, wsel):
            lab = "L_pf_%d" % npf[0]; npf[0] += 1
            e("s_cmp_lg_u32 s%d, %d" % (s_w, wsel))
            e("s_cbranch_scc1 %s" % lab)
            e("buffer_load_dword v%d, v%d, s[%d:%d], 0 offen offset:%d" % (m_pd, m_px, S_X, S_X + 3, gg * 128))
            e("s_add_u32 s%d, s%d, %d" % (s_pfq + 1, s_pfq, gg * 64 * 18432))
            e("buffer_load_dword v%d, v%d, s[%d:%d], s%d offen" % (m_pd, m_pq, S_Q, S_Q + 3, s_pfq + 1))
            g.label(lab)
        g.need(("sz",))
        PFD = cfg.get("pfd", 4)
        for gg in range(2, PFD): touch(gg, gg % 4)
    g.need(("sz",))
    e("v_cmp_gt_u32 vcc, 216, v0")
    e("s_and_saveexec_b64 s[%d:%d], vcc" % (s_sv, s_sv + 1))
    e("s_mov_b64 s[%d:%d], 0" % (s_bad, s_bad + 1))
    for i in range(3):
        e("v_lshlrev_b32 v%d, 16, v%d" % (sl, pa + i))
        e("v_and_b32 v%d, 0xffff0000, v%d" % (sh_, pa + i))
        e("v_lshlrev_b32 v%d, 16, v%d" % (zl, pa + 3 + i))
        e("v_and_b32 v%d, 0xffff0000, v%d" % (zh, pa + 3 + i))
        e("v_mul_f32 v%d, s%d, v%d" % (o4, s_c24, sl))
        e("v_mul_f32_e64 v%d, -v%d, v%d" % (o4 + 1, zl, sl))
        e("v_mul_f32 v%d, s%d, v%d" % (o4 + 2, s_c24, sh_))
        e("v_mul_f32_e64 v%d, -v%d, v%d" % (o4 + 3, zh, sh_))
        g.ds("ds_write_b128 v%d, v[%d:%d] offset:%d" % (v_tw, o4, o4 + 3, TAB + i * 3 * 1152), "tab")
        for (sv, zv) in ((sl, zl), (sh_, zh)):
            e("v_rndne_f32 v%d, v%d" % (tt, zv))
            e("v_cmp_neq_f32 vcc, v%d, v%d" % (tt, zv))
            e("s_or_b64 s[%d:%d], s[%d:%d], vcc" % (s_bad, s_bad + 1, s_bad, s_bad + 1))
            e("v_and_b32 v%d, 0x7fffffff, v%d" % (tt, zv))
            e("v_cmp_lt_u32 vcc, 0x43000000, v%d" % tt)
            e("s_or_b64 s[%d:%d], s[%d:%d], vcc" % (s_bad, s_bad + 1, s_bad, s_bad + 1))
            e("v_and_b32 v%d, 0x7fffffff, v%d" % (tt, sv))
            e("v_cmp_ne_u32 s[%d:%d], 0, v%d" % (s_os, s_os + 1, tt))
            e("v_subrev_u32 v%d, %d, v%d" % (tt, 27 << 23, tt))
            e("v_cmp_le_u32 vcc, %d, v%d" % (200 << 23, tt))
            e("s_and_b64 vcc, vcc, s[%d:%d]" % (s_os, s_os + 1))
            e("s_or_b64 s[%d:%d], s[%d:%d], vcc" % (s_bad, s_bad + 1, s_bad, s_bad + 1))
        g.need((), ("tab",))
    e("s_mov_b64 exec, s[%d:%d]" % (s_sv, s_sv + 1))
    e("s_cmp_lg_u64 s[%d:%d], 0" % (s_bad, s_bad + 1))
    e("s_cselect_b32 s%d, 1, 0" % s_os)
    e("s_lshl_b32 s%d, s%d, 2" % (s_os + 1, s_w))
    e("v_mov_b32 v%d, s%d" % (tt, s_os))
    e("v_mov_b32 v%d, s%d" % (tt + 1, s_os + 1))
    g.ds("ds_write_b32 v%d, v%d offset:%d" % (tt + 1, tt, FLAGS), "tab")
    e("v_mov_b32 v20, 0")
    g.need((), ("tab",))
    e("s_barrier")
    g.ds("ds_read_b128 v[16:19], v20 offset:%d" % FLAGS, "flag")
    g.need((), ("flag",))
    e("v_or_b32 v16, v16, v17")
    e("v_or3_b32 v16, v16, v18, v19")
    e("s_nop 0")
    e("v_readfirstlane_b32 s%d, v16" % s_os)
    e("s_cmp_eq_u32 s%d, 0" % s_os)
    e("s_cbranch_scc1 L_m_fast")
    e("s_barrier")
    e("v_cmp_gt_u32 vcc, 216, v0")
    e("s_and_saveexec_b64 s[%d:%d], vcc" % (s_sv, s_sv + 1))
    for i in range(3):
        e("v_lshlrev_b32 v%d, 16, v%d" % (o4, pa + i))
        e("v_and_b32 v%d, 0xffff0000, v%d" % (o4 + 2, pa + i))
        e("v_lshlrev_b32 v%d, 16, v%d" % (o4 + 1, pa + 3 + i))
        e("v_and_b32 v%d, 0xffff0000, v%d" % (o4 + 3, pa + 3 + i))
        e("v_xor_b32 v%d, 0x80000000, v%d" % (o4 + 1, o4 + 1))
        e("v_xor_b32 v%d, 0x80000000, v%d" % (o4 + 3, o4 + 3))
        g.ds("ds_write_b128 v%d, v[%d:%d] offset:%d" % (v_tw, o4, o4 + 3, TAB + i * 3 * 1152), "tab")
        g.need((), ("tab",))
    e("s_mov_b64 exec, s[%d:%d]" % (s_sv, s_sv + 1))
    e("s_barrier")
    e("s_barrier")
    g.label("L_m_fast")
    def xfrag_reads(gg, s):
        out = []
        for mt in range(4):
            b = a_x + s * 16 + mt * 4
            out.append(("ds", "ds_read_b128 a[%d:%d], v%d offset:%d" % (b, b + 3, m_xr[s], (gg % XR) * XSL + mt * 2048), "xf%d_%d" % (gg, s)))
        return out
    def stores(mt):
        out = []
        for r in range(4):
            tq = m_tmp + r * 4
            for h in range(4):
                out.append(("v", "v_cvt_pk_bf16_f32 v%d, v%d, v%d" % (tq + h, accreg(mt, 2 * h) + r, accreg(mt, 2 * h + 1) + r)))
            out.append(("s", "s_add_u32 s%d, s%d, %d" % (s_os, s_oo, (mt * 16 + r) * 9216)))
            out.append(("vm", "buffer_store_dwordx4 v[%d:%d], v%d, s[%d:%d], s%d offen%s" % (tq, tq + 3, m_oa, S_O, S_O + 3, s_os, cfg.get("stm", "")), "st"))
        b = accreg(mt, 8)
        for rp in range(2):
            td = m_tmp + 24 + (mt * 2 + rp) % 4
            out.append(("v", "v_cvt_pk_bf16_f32 v%d, v%d, v%d" % (td, b + 2 * rp, b + 2 * rp + 1)))
            out.append(("s", "s_add_u32 s%d, s%d, %d" % (s_os, s_oo, (mt * 16 + 2 * rp) * 9216)))
            out.append(("vm", "buffer_store_short v%d, v%d, s[%d:%d], s%d offen offset:256%s" % (td, m_ob, S_O, S_O + 3, s_os, cfg.get("stm", "")), "st"))
            out.append(("s", "s_add_u32 s%d, s%d, %d" % (s_os, s_oo, (mt * 16 + 2 * rp + 1) * 9216)))
            out.append(("vm", "buffer_store_short_d16_hi v%d, v%d, s[%d:%d], s%d offen offset:256%s" % (td, m_ob, S_O, S_O + 3, s_os, cfg.get("stm", "")), "st"))
        return out
    LS = cfg.get("lastsplit", 2)
    mtsets = {1: [(0, 1, 2, 3)], 2: [(0, 1), (2, 3)], 4: [(0,), (1,), (2,), (3,)]}[LS]
    frags = [(j, s, t, (0, 1, 2, 3)) for j in range(NG - 1) for s in range(2) for t in range(T)]
    frags += [(NG - 1, s, t, ms) for ms in mtsets for s in range(2) for t in range(T)]
    def frag_read(fi):
        j, s, t, _ = frags[fi]
        b = a_fr + (fi % FR) * 4
        xv = (2 * s) ^ ((t >> 2) if t < 8 else 0)
        return ("ds", "ds_read_b128 a[%d:%d], v%d offset:%d" % (b, b + 3, m_r[xv], WB + (j % 2) * SLOT + t * 2048), "f%d" % fi)
    PF = FR - 1
    emit_items(xfrag_reads(0, 0))
    nfr = 0
    for fi in range(PF):
        emit_item(frag_read(fi)); nfr += 1
    P = []; ST = []; stdelay = 0
    prevj = -1; fl = 0; prevms = None
    for fi, (j, s, t, ms) in enumerate(frags):
        if j != prevj:
            emit_items(P); P = []
            if stamp == 1: e("s_memtime s[%d:%d]" % (STAMP0 + 2 + 2 * j, STAMP0 + 3 + 2 * j))
            P = xfrag_reads(j, 1)
            fl = 0; prevj = j
            if cfg.get("pf", 1) == 1 and j + cfg.get("pfd", 4) < NG: touch(j + cfg.get("pfd", 4), j % 4)
        if j == NG - 1 and prevms is not None and ms != prevms:
            for mt in prevms: ST += stores(mt)
            stdelay = 6
        prevms = ms if j == NG - 1 else None
        fb = a_fr + (fi % FR) * 4
        if fl == BARF and j + 1 < NG:
            assert nfr >= (j + 1) * 2 * T, (nfr, j)
            g.need((), ("f%d" % ((j + 1) * 2 * T - 1),))
            e("s_barrier")
            P += xfrag_reads(j + 1, 0)
        for mt in ms:
            ab = accreg(mt, t)
            accs = "v[%d:%d]" % (ab, ab + 3)
            g.need((), ("f%d" % fi, "xf%d_%d" % (j, s)))
            csrc = "0" if (j == 0 and s == 0) else accs
            xb_ = a_x + s * 16 + mt * 4
            e("v_mfma_f32_16x16x32_bf16 %s, a[%d:%d], a[%d:%d], %s" % (accs, xb_, xb_ + 3, fb, fb + 3, csrc))
            cnt = 0
            if nfr < len(frags) and nfr <= fi + PF and (frags[nfr][0] == j or fl >= BARF):
                emit_item(frag_read(nfr)); nfr += 1; cnt += 1
            while P and cnt < 1:
                emit_item(P.pop(0)); cnt += 1
            if stdelay: stdelay -= 1
            else:
                while ST and (cnt < 2 or ST[0][0] == "s"):
                    it = ST.pop(0); emit_item(it); cnt += (it[0] != "s")
        fl += 1
    emit_items(P)
    emit_items(ST)
    e("s_nop 7")
    e("s_nop 1")
    for mt in prevms: emit_items(stores(mt))
    if stamp: dump_stamps(cfg.get("stw", 0))
    e("s_endpgm")

    g.label("L_helper")
    g.vmq = []; g.lgq = []
    hst = [1]
    def hs():
        if stamp == 3:
            e("s_memtime s[%d:%d]" % (STAMP0 + 2 * hst[0], STAMP0 + 1 + 2 * hst[0])); hst[0] += 1
    e("s_mul_i32 s%d, s%d, 1152" % (s_xo, s_t0))
    for rb in range(1, 8):
        e("s_add_u32 s%d, s%d, %d" % (s_xo + rb, s_xo, rb * 8 * 1152))
    e("s_mul_i32 s%d, s%d, 576" % (s_q0, s_nblk))
    e("s_mov_b32 s%d, 0x4b800000" % s_c24)
    lane = h_tmp + 1; kg = h_tmp + 2; kb = h_tmp + 4; nb = h_tmp + 5; t7 = h_tmp + 7
    k8 = h_tmp + 8; nq_ = h_tmp + 9; hh = h_tmp + 10; ii = h_tmp + 11; t12 = h_tmp + 12; tl = h_tl
    e("v_and_b32 v%d, 63, v0" % lane)
    e("v_and_b32 v%d, 255, v0" % tl)
    e("v_lshrrev_b32 v%d, 4, v%d" % (kb, tl))
    e("v_and_b32 v%d, 15, v0" % nb)
    e("v_lshrrev_b32 v%d, 4, v%d" % (kg, lane))
    e("v_lshrrev_b32 v%d, 3, v%d" % (t7, lane))
    e("v_mul_u32_u24 v%d, 1152, v%d" % (h_xd[0], t7))
    e("v_and_b32 v%d, 7, v%d" % (t7, lane))
    e("v_xor_b32 v%d, v%d, v%d" % (t7, t7, kg))
    e("v_lshl_add_u32 v%d, v%d, 4, v%d" % (h_xd[0], t7, h_xd[0]))
    e("v_xor_b32 v%d, 64, v%d" % (h_xd[1], h_xd[0]))
    e("v_mul_u32_u24 v%d, %d, v%d" % (h_qb, 4 * 18432, kb))
    e("v_lshl_add_u32 v%d, v%d, 2, v%d" % (h_qb, nb, h_qb))
    e("v_add_u32 v%d, 512, v%d" % (h_qb, h_qb))
    e("v_lshrrev_b32 v%d, 5, v%d" % (k8, tl))
    e("v_and_b32 v%d, 31, v0" % nq_)
    e("v_mul_u32_u24 v%d, %d, v%d" % (h_qa, 8 * 18432, k8))
    e("v_lshl_add_u32 v%d, v%d, 4, v%d" % (h_qa, nq_, h_qa))
    pa = h_pa
    e("s_waitcnt lgkmcnt(0)")
    hs()
    srd(S_X, 4, M * K * 2); srd(S_Q, 6, K * N * 4); srd(S_SC, 8, NG * N * 2); srd(S_Z, 10, NG * N * 2)
    def qreg(slot, r, ee):
        b = h_st + slot * 36
        return b + r * 4 + ee if ee < 4 else b + 32 + r
    def load_q(j):
        slot = j % NS
        out = []
        for r in range(8):
            b = qreg(slot, r, 0)
            out.append(("s", "s_add_u32 s%d, s%d, %d" % (s_qs, s_q0, (j * 64 + r) * 18432)))
            out.append(("vm", "buffer_load_dwordx4 v[%d:%d], v%d, s[%d:%d], s%d offen" % (b, b + 3, h_qa, S_Q, S_Q + 3, s_qs), "q%d" % j))
        for r in range(4):
            out.append(("s", "s_add_u32 s%d, s%d, %d" % (s_qs + 1, s_q0, (j * 64 + r) * 18432)))
            out.append(("vm", "buffer_load_dword v%d, v%d, s[%d:%d], s%d offen" % (qreg(slot, r, 4), h_qb, S_Q, S_Q + 3, s_qs + 1), "q%d" % j))
        return out
    def dma_x(gg):
        res = []
        for rb in range(8):
            c = (gg % XR) * XSL + rb * 1024 - gg * 128
            if c >= 0: res.append(("s", "s_add_u32 m0, s%d, %d" % (s_xw, c)))
            else: res.append(("s", "s_sub_u32 m0, s%d, %d" % (s_xw, -c)))
            res.append(("s", "s_nop 0"))
            res.append(("vm", "buffer_load_dwordx4 v%d, s[%d:%d], s%d offen offset:%d lds" % (h_xd[rb & 1], S_X, S_X + 3, s_xo + rb, gg * 128), "x%d" % gg))
        return res
    d0 = pa + 16
    e("v_lshlrev_b32 v%d, 3, v%d" % (t7, nq_))
    e("v_lshl_add_u32 v%d, v%d, 1, 0" % (t12, nb))
    g.vm("buffer_load_dwordx2 v[%d:%d], v%d, s[%d:%d], s%d offen" % (d0, d0 + 1, t7, S_SC, S_SC + 3, s_t1), "d0")
    g.vm("buffer_load_dwordx2 v[%d:%d], v%d, s[%d:%d], s%d offen" % (d0 + 2, d0 + 3, t7, S_Z, S_Z + 3, s_t1), "d0")
    g.vm("buffer_load_ushort v%d, v%d, s[%d:%d], s%d offen offset:256" % (d0 + 4, t12, S_SC, S_SC + 3, s_t1), "d0")
    g.vm("buffer_load_ushort v%d, v%d, s[%d:%d], s%d offen offset:256" % (d0 + 5, t12, S_Z, S_Z + 3, s_t1), "d0")
    emit_items(load_q(0)); nq = 1
    emit_items(dma_x(0)); nx = 1
    if cfg.get("early", 1): emit_items(load_q(1)); nq = 2
    if cfg.get("pf", 1) == 3:
        emit_items(load_q(1)); nq = 2
        emit_items(dma_x(1)); nx = 2
        px = pa + 0; pq = pa + 1; pl = pa + 2; pr = pa + 3; pd = pa + 4
        m18, s18 = magic(18, 36 * 31 + 63)
        e("s_lshr_b32 s%d, s2, 3" % s_t2)
        e("s_lshl_b32 s%d, s%d, 6" % (s_t3, s_t2))
        e("v_add_u32 v%d, s%d, v%d" % (px, s_t3, lane))
        e("v_mul_u32_u24 v%d, 1152, v%d" % (px, px))
        e("s_mul_i32 s%d, s%d, 36" % (s_t3, s_t2))
        e("v_add_u32 v%d, s%d, v%d" % (pl, s_t3, lane))
        e("v_mul_u32_u24 v%d, %d, v%d" % (pr, m18, pl))
        e("v_lshrrev_b32 v%d, %d, v%d" % (pr, s18, pr))
        e("v_mul_u32_u24 v%d, 18, v%d" % (pq, pr))
        e("v_sub_u32 v%d, v%d, v%d" % (pl, pl, pq))
        e("v_mul_u32_u24 v%d, 18432, v%d" % (pq, pr))
        e("v_lshl_add_u32 v%d, v%d, 7, v%d" % (pq, pl, pq))
        e("s_and_b32 s%d, s2, 7" % s_t2)
        e("s_mul_i32 s%d, s%d, 2304" % (s_t2, s_t2))
        e("s_and_b32 s%d, s%d, 3" % (s_t3, s_w))
        e("s_mul_i32 s%d, s%d, %d" % (s_os, s_t3, 64 * 18432))
        e("s_add_u32 s%d, s%d, s%d" % (s_t2, s_t2, s_os))
        e("s_lshl_b32 s%d, s%d, 7" % (s_t3, s_t3))
        for rep in range(2):
            g0 = 2 + 4 * rep
            g.vm("buffer_load_dword v%d, v%d, s[%d:%d], s%d offen offset:%d" % (pd, px, S_X, S_X + 3, s_t3, g0 * 128), "pf")
            e("s_add_u32 s%d, s%d, %d" % (s_os, s_t2, g0 * 64 * 18432))
            g.vm("buffer_load_dword v%d, v%d, s[%d:%d], s%d offen" % (pd + 1, pq, S_Q, S_Q + 3, s_os), "pf")
    hs()
    e("v_lshrrev_b32 v%d, 1, v%d" % (hh, nb))
    e("v_and_b32 v%d, 1, v%d" % (t7, nb))
    e("v_lshlrev_b32 v%d, 2, v%d" % (t7, t7))
    e("v_xor_b32 v%d, v%d, v%d" % (hh, hh, t7))
    e("v_lshrrev_b32 v%d, 1, v%d" % (t7, kb))
    e("v_xor_b32 v%d, v%d, v%d" % (t7, t7, hh))
    e("v_lshlrev_b32 v%d, 4, v%d" % (t7, t7))
    e("v_lshl_add_u32 v%d, v%d, 7, v%d" % (h_wb, nb, t7))
    e("v_and_b32 v%d, 1, v%d" % (t7, kb))
    e("v_lshl_add_u32 v%d, v%d, 3, v%d" % (h_wb, t7, h_wb))
    e("v_lshrrev_b32 v%d, 1, v%d" % (ii, nq_))
    e("v_lshrrev_b32 v%d, 1, v%d" % (hh, ii))
    e("v_and_b32 v%d, 1, v%d" % (t7, ii))
    e("v_lshlrev_b32 v%d, 2, v%d" % (t7, t7))
    e("v_xor_b32 v%d, v%d, v%d" % (hh, hh, t7))
    e("v_and_b32 v%d, 1, v%d" % (t12, nq_))
    e("v_lshlrev_b32 v%d, 1, v%d" % (t7, t12))
    e("v_xor_b32 v%d, v%d, v%d" % (hh, hh, t7))
    e("v_xor_b32 v%d, v%d, v%d" % (hh, hh, k8))
    e("v_lshlrev_b32 v%d, 4, v%d" % (hh, hh))
    e("v_lshl_add_u32 v%d, v%d, 6, v%d" % (t7, t12, ii))
    e("v_lshl_add_u32 v%d, v%d, 7, v%d" % (h_wa, t7, hh))
    e("v_lshlrev_b32 v%d, 5, v%d" % (h_sa, nq_))
    e("v_lshlrev_b32 v%d, 3, v%d" % (h_sb, nb))
    sl, sh_, zl, zh = pa + 12, pa + 13, pa + 14, pa + 15
    o4 = pa + 24; tt = pa + 28
    def scale_reads(j):
        out = []
        off0 = TAB + j * 1152
        for h in range(2):
            out.append(("ds", "ds_read_b128 v[%d:%d], v%d offset:%d" % (h_sc + 4 * h, h_sc + 4 * h + 3, h_sa, off0 + 16 * h), "sc%d" % j))
        out.append(("ds", "ds_read_b64 v[%d:%d], v%d offset:%d" % (h_sc + 8, h_sc + 9, h_sb, off0 + 1024), "sc%d" % j))
        return out
    def dq_elem(generic, f, q, c1, c0, dep):
        if not generic:
            return [("v", "v_fma_mix_f32 v%d, v%d, v%d, v%d op_sel_hi:[1,0,0]" % (f, q, c1, c0)) + dep]
        return [("v", "v_cvt_f32_i32 v%d, v%d" % (f, q)) + dep,
                ("v", "v_cvt_pk_bf16_f32 v%d, 0, v%d" % (f, f)),
                ("v", "v_add_f32 v%d, v%d, v%d" % (f, f, c0)),
                ("v", "v_cvt_pk_bf16_f32 v%d, 0, v%d" % (f, f)),
                ("v", "v_mul_f32 v%d, v%d, v%d" % (f, f, c1))]
    def dequant(j, generic):
        slot = j % NS
        out = []; first = True; pend = []
        for ee in range(5):
            f = h_tmp + (ee % 2) * 8
            c1 = h_sc + 2 * ee; c0 = c1 + 1
            nr = 8 if ee < 4 else 4
            for r in range(nr):
                dep = ((("q%d" % j,), ("sc%d" % j,)),) if first else ()
                first = False
                out += dq_elem(generic, f + r, qreg(slot, r, ee), c1, c0, dep)
                if r == 1 and pend: out.append(pend.pop(0))
            for h in range(nr // 2):
                out.append(("v", "v_cvt_pk_bf16_f32 v%d, v%d, v%d" % (f + h, f + 2 * h, f + 2 * h + 1)))
            if ee < 4:
                pend.append(("ds", "ds_write_b128 v%d, v[%d:%d] offset:%d" % (h_wa, f, f + 3, WB + (j % 2) * SLOT + ee * 2048), "w%d" % j))
            else:
                pend.append(("ds", "ds_write_b64 v%d, v[%d:%d] offset:%d" % (h_wb, f, f + 1, WB + (j % 2) * SLOT + 8 * 2048), "w%d" % j))
        out += pend
        return out
    g.need(("d0",))
    hs()
    for ee in range(5):
        if ee < 4:
            sp = d0 + ee // 2; zp = d0 + 2 + ee // 2
            if ee % 2 == 0:
                e("v_lshlrev_b32 v%d, 16, v%d" % (sl, sp)); e("v_lshlrev_b32 v%d, 16, v%d" % (zl, zp))
            else:
                e("v_and_b32 v%d, 0xffff0000, v%d" % (sl, sp)); e("v_and_b32 v%d, 0xffff0000, v%d" % (zl, zp))
        else:
            e("v_lshlrev_b32 v%d, 16, v%d" % (sl, d0 + 4)); e("v_lshlrev_b32 v%d, 16, v%d" % (zl, d0 + 5))
        e("v_mul_f32 v%d, s%d, v%d" % (h_sc + 2 * ee, s_c24, sl))
        e("v_mul_f32_e64 v%d, -v%d, v%d" % (h_sc + 2 * ee + 1, zl, sl))
    g.need(("q0",))
    hs()
    D = dequant(0, False)
    V = []
    if nq < 2: V += load_q(1); nq = 2
    if nx < 2: V += dma_x(1); nx = 2
    while D:
        while V and V[0][0] == "s": emit_item(V.pop(0))
        if V: emit_item(V.pop(0))
        for _ in range(3):
            if D: emit_item(D.pop(0))
    hs()
    emit_items(V)
    hs()
    g.need(("x0",), ("w0",))
    hs()
    e("s_barrier")
    hs()
    e("v_mov_b32 v%d, 0" % tt)
    g.ds("ds_read_b128 v[%d:%d], v%d offset:%d" % (o4, o4 + 3, tt, FLAGS), "flag")
    if nq < 2: emit_items(load_q(1)); nq = 2
    if nx < 2: emit_items(dma_x(1)); nx = 2
    g.need((), ("flag",))
    e("v_or_b32 v%d, v%d, v%d" % (o4, o4, o4 + 1))
    e("v_or3_b32 v%d, v%d, v%d, v%d" % (o4, o4, o4 + 2, o4 + 3))
    e("s_nop 0")
    e("v_readfirstlane_b32 s%d, v%d" % (s_os, o4))
    e("s_cmp_lg_u32 s%d, 0" % s_os)
    e("s_cbranch_scc1 L_h_generic")
    saved = (list(g.vmq), list(g.lgq), nq, nx)
    def hbody(generic):
        g.vmq, g.lgq = list(saved[0]), list(saved[1])
        nq, nx = saved[2], saved[3]
        if generic:
            e("s_barrier")
            e("s_barrier")
            emit_items(scale_reads(0))
            emit_items(dequant(0, True))
            g.need((), ("w0",))
            e("s_barrier")
        emit_items(scale_reads(1))
        V = []
        for j in range(NG - 1):
            if stamp == 1 and not generic: e("s_memtime s[%d:%d]" % (STAMP0 + 2 + 2 * j, STAMP0 + 3 + 2 * j))
            if stamp == 3 and not generic and j in (0, 1): hs()
            D = dequant(j + 1, generic)
            while True:
                added = False
                if nq < NG and nq <= j + NS and nq <= nx + 0:
                    V += load_q(nq); nq += 1; added = True
                elif nx < NG and nx <= j + 2:
                    V += dma_x(nx); nx += 1; added = True
                elif nq < NG and nq <= j + NS:
                    V += load_q(nq); nq += 1; added = True
                if not added: break
            per = cfg.get("ratio", 3) * (5 if generic else 1)
            while any(it[0] == "vm" and it[2] == "q%d" % (j + 1) for it in V):
                emit_item(V.pop(0))
            while D:
                while V and V[0][0] == "s": emit_item(V.pop(0))
                if V: emit_item(V.pop(0))
                for _ in range(per):
                    if D: emit_item(D.pop(0))
            while any(it[0] == "vm" and it[2] == "x%d" % (j + 1) for it in V):
                emit_item(V.pop(0))
            if j == NG - 2: emit_items(V); V = []
            if j + 2 < NG: emit_items(scale_reads(j + 2))
            g.need(("x%d" % (j + 1),), ("w%d" % (j + 1),))
            e("s_barrier")
        if stamp and not generic: dump_stamps(cfg.get("stw", 0))
        e("s_endpgm")
    hbody(False)
    g.label("L_h_generic")
    hbody(True)
    g.label("L_end")
    e("s_endpgm")
    tail = ['.section .rodata,"a"', ".p2align 6", ".amdhsa_kernel %s" % KNAME,
            "  .amdhsa_next_free_vgpr %d" % (ACCOFF + NAG), "  .amdhsa_next_free_sgpr 102", "  .amdhsa_accum_offset %d" % ACCOFF,
            "  .amdhsa_group_segment_fixed_size 0", "  .amdhsa_kernarg_size 56", "  .amdhsa_user_sgpr_count 2",
            "  .amdhsa_user_sgpr_kernarg_segment_ptr 1", "  .amdhsa_system_sgpr_workgroup_id_x 1",
            "  .amdhsa_float_denorm_mode_32 3", "  .amdhsa_float_denorm_mode_16_64 3", ".end_amdhsa_kernel"]
    return "\n".join(hdr + g.L + tail) + "\n", ACCOFF + NAG, LDS_BYTES

if __name__ == "__main__":
    ap = argparse.ArgumentParser()
    ap.add_argument("--ns", type=int, default=3)
    ap.add_argument("--xr", type=int, default=3)
    ap.add_argument("--fr", type=int, default=6)
    ap.add_argument("--barf", type=int, default=14)
    ap.add_argument("--prio", type=int, default=1)
    ap.add_argument("--dis", default="")
    ap.add_argument("--pf", type=int, default=0)
    ap.add_argument("--early", type=int, default=0)
    ap.add_argument("--stm", default="")
    ap.add_argument("--tlb", type=int, default=0)
    ap.add_argument("--pfd", type=int, default=4)
    ap.add_argument("--ratio", type=int, default=3)
    ap.add_argument("--lastsplit", type=int, default=2)
    ap.add_argument("--stamp", type=int, default=0)
    ap.add_argument("--stw", type=int, default=0)
    ap.add_argument("-o", default="standalone__weight_only_int_quip_2__prompt.s")
    a = ap.parse_args()
    cfg = dict(ns=a.ns, xr=a.xr, fr=a.fr, barf=a.barf, prio=a.prio, dis=a.dis, pf=a.pf, early=a.early, stm=(" " + a.stm.replace("+", " ")) if a.stm else "", tlb=a.tlb, pfd=a.pfd, ratio=a.ratio, lastsplit=a.lastsplit, stamp=a.stamp, stw=a.stw)
    s, nvg, lds = build(cfg)
    open(a.o, "w").write(s)
    print("regs", nvg, "LDS", lds, "lines", s.count("\n"))
```

```python
import sys, argparse

M, K, N = 2048, 576, 4608
NG = 9
KNAME = "standalone__weight_only_int_quip_2__prompt_kernel"

class Gen:
    def __init__(self):
        self.L = []; self.vmq = []; self.lgq = []
    def e(self, s): self.L.append("    " + s)
    def label(self, s): self.L.append(s + ":")
    def vm(self, s, tag):
        self.e(s); self.vmq.append(tag)
        assert len(self.vmq) <= 62, "too many VMEM outstanding: %d" % len(self.vmq)
    def ds(self, s, tag):
        self.e(s); self.lgq.append(tag)
    def need(self, vmtags=(), lgtags=()):
        w = []
        nv = None
        for t in vmtags:
            idx = [i for i, x in enumerate(self.vmq) if x == t]
            if idx:
                n = len(self.vmq) - 1 - idx[-1]
                nv = n if nv is None else min(nv, n)
        if nv is not None:
            self.vmq = self.vmq[len(self.vmq) - nv:] if nv else []
            w.append("vmcnt(%d)" % nv)
        nl = None
        for t in lgtags:
            idx = [i for i, x in enumerate(self.lgq) if x == t]
            if idx:
                n = len(self.lgq) - 1 - idx[-1]
                nl = n if nl is None else min(nl, n)
        if nl is not None:
            nl = min(nl, 15)
            self.lgq = self.lgq[len(self.lgq) - nl:] if nl else []
            w.append("lgkmcnt(%d)" % nl)
        if w: self.e("s_waitcnt " + " ".join(w))

def magic(d, maxv):
    for sh in range(8, 24):
        mul = ((1 << sh) + d - 1) // d
        if all(((v * mul) >> sh) == v // d for v in range(maxv + 1)):
            assert maxv * mul < (1 << 32) and mul < (1 << 24)
            return mul, sh
    raise Exception("no magic")

def build(cfg):
    NS = cfg["ns"]; XR = cfg["xr"]; FR = cfg["fr"]; BARF = cfg["barf"]
    T = 9
    SLOT = T * 2048
    WB = 0
    TAB = 2 * SLOT
    FLAGS = TAB + NG * 144 * 8
    XB = (FLAGS + 64 + 1023) // 1024 * 1024
    XSL = 8192
    LDS_BYTES = XB + 4 * XR * XSL
    assert LDS_BYTES <= 163840, LDS_BYTES
    ACCOFF = 200
    m_r = [1, 2, 3, 4]; m_xr = [5, 6]; m_oa = 7; m_ob = 8
    m_px, m_pq, m_pd = 9, 10, 11
    m_tmp = 12
    m_acc = 48
    def accreg(mt, t): return m_acc + (t * 4 + mt) * 4
    a_x = 0; a_fr = 32
    NAG = 32 + 4 * FR
    assert ACCOFF + NAG <= 256
    h_qa, h_qb, h_wa, h_wb, h_sa, h_sb = 1, 2, 3, 4, 5, 6
    h_xd = [7, 8]
    h_tl = 9
    h_tmp = 12
    h_sc = 28
    h_pa = 40
    h_st = 72 if NS <= 3 else 56
    if NS > 3: h_pa = 40
    assert h_st + NS * 36 <= ACCOFF, (h_st, NS)

    g = Gen(); e = g.e
    hdr = ["; W4 dequant GEMM v5 (4 MFMA + 4 helper waves), generated by gen/gen9.py cfg=%s" % (cfg,),
           "; @launch grid=(256,1,1) block=(512,1,1) lds=%d" % LDS_BYTES,
           '.amdgcn_target "amdgcn-amd-amdhsa--gfx950"', ".text", ".globl %s" % KNAME, ".p2align 8",
           ".type %s,@function" % KNAME, "%s:" % KNAME]
    S_X, S_Q, S_SC, S_Z, S_O = 16, 20, 24, 28, 32
    s_w = 36; s_nblk = 37; s_mblk = 38; s_xw = 39
    s_xo = 40
    s_oo = 48; s_q0 = 49
    s_t0, s_t1, s_t2, s_t3 = 50, 51, 52, 53
    s_qs = 54; s_os = 58
    s_bad = 60; s_sv = 62; s_c24 = 64; s_pfq = 44
    STAMP0 = 66
    stamp = cfg.get("stamp", 0)
    dis = cfg.get("dis", "")
    if stamp: e("s_memtime s[%d:%d]" % (STAMP0, STAMP0 + 1))
    e("s_cmp_ge_u32 s2, 256")
    e("s_cbranch_scc1 L_end")
    e("s_load_dwordx4 s[4:7], s[0:1], 0")
    e("s_load_dwordx4 s[8:11], s[0:1], 16")
    e("s_load_dwordx2 s[12:13], s[0:1], 32")
    e("v_lshrrev_b32 v12, 6, v0")
    e("s_and_b32 s%d, s2, 7" % s_t0)
    e("s_lshr_b32 s%d, s2, 3" % s_t1)
    e("v_readfirstlane_b32 s%d, v12" % s_w)
    e("s_and_b32 s%d, s%d, 3" % (s_t2, s_t1))
    e("s_lshl_b32 s%d, s%d, 2" % (s_nblk, s_t0))
    e("s_add_u32 s%d, s%d, s%d" % (s_nblk, s_nblk, s_t2))
    e("s_lshr_b32 s%d, s%d, 2" % (s_mblk, s_t1))
    e("s_lshl_b32 s%d, s%d, 8" % (s_t0, s_mblk))
    e("s_and_b32 s%d, s%d, 3" % (s_t3, s_w))
    e("s_lshl_b32 s%d, s%d, 6" % (s_t1, s_t3))
    e("s_add_u32 s%d, s%d, s%d" % (s_t0, s_t0, s_t1))
    e("s_mul_i32 s%d, s%d, %d" % (s_xw, s_t3, XR * XSL))
    e("s_add_u32 s%d, s%d, %d" % (s_xw, s_xw, XB))
    e("s_mul_i32 s%d, s%d, 288" % (s_t1, s_nblk))
    e("s_cmp_ge_u32 s%d, 4" % s_w)
    e("s_cbranch_scc1 L_helper")

    def srd(sd, sp, nbytes):
        e("s_mov_b32 s%d, s%d" % (sd, sp))
        e("s_and_b32 s%d, s%d, 0xffff" % (sd + 1, sp + 1))
        e("s_mov_b32 s%d, %d" % (sd + 2, nbytes))
        e("s_mov_b32 s%d, 0x00020000" % (sd + 3))
    def emit_item(it):
        k = it[0]
        if k == "vm" and it[2].startswith("x") and "x" in dis: return
        if k == "vm" and it[2].startswith("q") and "q" in dis: return
        if k == "vm" and it[2].startswith("st") and "s" in dis: return
        if k in ("s", "v"):
            if len(it) > 2: g.need(*it[2])
            e(it[1])
        elif k == "vm":
            if len(it) > 3: g.need(*it[3])
            g.vm(it[1], it[2])
        elif k == "ds":
            if len(it) > 3: g.need(*it[3])
            g.ds(it[1], it[2])
        else: raise Exception(k)
    def emit_items(items):
        for it in items: emit_item(it)
    def dump_stamps(wsel):
        if stamp == 1:
            e("s_memtime s[%d:%d]" % (STAMP0 + 20, STAMP0 + 21))
            e("s_waitcnt vmcnt(0)")
            e("s_memtime s[%d:%d]" % (STAMP0 + 22, STAMP0 + 23))
        e("s_waitcnt lgkmcnt(0)")
        e("s_cmp_lg_u32 s2, 5")
        e("s_cbranch_scc1 L_end")
        e("s_cmp_lg_u32 s%d, %d" % (s_w, wsel))
        e("s_cbranch_scc1 L_end")
        e("s_load_dwordx2 s[4:5], s[0:1], 40")
        e("s_waitcnt lgkmcnt(0)")
        e("s_mov_b32 s6, 256")
        e("s_mov_b32 s7, 0x00020000")
        for i in range(11):
            e("s_sub_u32 s%d, s%d, s%d" % (STAMP0 + 2 + 2 * i, STAMP0 + 2 + 2 * i, STAMP0))
            e("v_mov_b32 v1, s%d" % (STAMP0 + 2 + 2 * i))
            e("v_mov_b32 v2, %d" % (4 * i))
            e("buffer_store_dword v1, v2, s[4:7], 0 offen")

    g.vmq = []; g.lgq = []
    if cfg.get("prio", 1): e("s_setprio %d" % cfg.get("prio", 1))
    e("s_mul_i32 s%d, s%d, 9216" % (s_oo, s_t0))
    e("s_add_u32 s%d, s%d, s%d" % (s_oo, s_oo, s_t1))
    lane, kg, nb, t7, hh = 12, 13, 14, 15, 16
    e("v_and_b32 v%d, 63, v0" % lane)
    e("v_and_b32 v%d, 15, v0" % nb)
    e("v_lshrrev_b32 v%d, 4, v%d" % (kg, lane))
    e("v_lshrrev_b32 v%d, 1, v%d" % (t7, nb))
    e("v_xor_b32 v%d, v%d, v%d" % (t7, kg, t7))
    e("v_lshlrev_b32 v%d, 4, v%d" % (t7, t7))
    e("v_lshl_add_u32 v%d, v%d, 7, v%d" % (m_xr[0], nb, t7))
    e("v_add_u32 v%d, s%d, v%d" % (m_xr[0], s_xw, m_xr[0]))
    e("v_xor_b32 v%d, 64, v%d" % (m_xr[1], m_xr[0]))
    e("v_lshrrev_b32 v%d, 1, v%d" % (hh, nb))
    e("v_and_b32 v%d, 1, v%d" % (t7, nb))
    e("v_lshlrev_b32 v%d, 2, v%d" % (t7, t7))
    e("v_xor_b32 v%d, v%d, v%d" % (hh, hh, t7))
    e("v_xor_b32 v%d, v%d, v%d" % (t7, kg, hh))
    e("v_lshlrev_b32 v%d, 4, v%d" % (t7, t7))
    e("v_lshl_add_u32 v%d, v%d, 7, v%d" % (m_r[0], nb, t7))
    for xx in range(1, 4):
        e("v_xor_b32 v%d, %d, v%d" % (m_r[xx], xx * 32, m_r[0]))
    e("v_mul_u32_u24 v%d, %d, v%d" % (m_ob, 4 * 9216, kg))
    e("v_lshl_add_u32 v%d, v%d, 4, v%d" % (m_oa, nb, m_ob))
    e("v_lshl_add_u32 v%d, v%d, 1, v%d" % (m_ob, nb, m_ob))
    mul72, sh72 = magic(72, 255)
    pa = m_acc
    gq = pa + 8; cp = pa + 9; szo = pa + 10; v_tw = pa + 6
    e("v_mul_u32_u24 v%d, %d, v0" % (gq, mul72))
    e("v_lshrrev_b32 v%d, %d, v%d" % (gq, sh72, gq))
    e("v_mul_u32_u24 v%d, 72, v%d" % (cp, gq))
    e("v_sub_u32 v%d, v0, v%d" % (cp, cp))
    e("v_mul_u32_u24 v%d, 9216, v%d" % (szo, gq))
    e("v_lshl_add_u32 v%d, v%d, 2, v%d" % (szo, cp, szo))
    e("v_mul_u32_u24 v%d, 1152, v%d" % (v_tw, gq))
    e("v_lshl_add_u32 v%d, v%d, 4, v%d" % (v_tw, cp, v_tw))
    e("s_add_u32 s%d, s%d, %d" % (s_t2, s_t1, 3 * 9216))
    e("s_add_u32 s%d, s%d, %d" % (s_t3, s_t1, 6 * 9216))
    e("s_mov_b32 s%d, 0x4b800000" % s_c24)
    e("s_waitcnt lgkmcnt(0)")
    srd(S_O, 12, M * N * 2); srd(S_SC, 8, NG * N * 2); srd(S_Z, 10, NG * N * 2)
    for i, so in enumerate((s_t1, s_t2, s_t3)):
        g.vm("buffer_load_dword v%d, v%d, s[%d:%d], s%d offen" % (pa + i, szo, S_SC, S_SC + 3, so), "sz")
        g.vm("buffer_load_dword v%d, v%d, s[%d:%d], s%d offen" % (pa + 3 + i, szo, S_Z, S_Z + 3, so), "sz")
    sl, sh_, zl, zh = pa + 12, pa + 13, pa + 14, pa + 15
    o4 = pa + 24; tt = pa + 28
    if cfg.get("tlb", 0):
        sh = cfg["tlb"]
        srd(S_X, 4, M * K * 2); srd(S_Q, 6, K * N * 4)
        e("v_lshlrev_b32 v%d, %d, v0" % (pa + 32, sh))
        for (sr, nbytes) in ((S_Q, K * N * 4), (S_X, M * K * 2), (S_O, M * N * 2)):
            nrep = (nbytes + (256 << sh) - 1) // (256 << sh)
            for rp in range(nrep):
                if rp: e("s_mov_b32 s%d, %d" % (s_qs, rp * (256 << sh)))
                g.vm("buffer_load_dword v%d, v%d, s[%d:%d], %s offen" % (pa + 33, pa + 32, sr, sr + 3, ("s%d" % s_qs) if rp else "0"), "tlb")
    if cfg.get("pf", 1) == 1:
        srd(S_X, 4, M * K * 2); srd(S_Q, 6, K * N * 4)
        px = pa + 32; pq = pa + 33; pl = pa + 34; pr = pa + 35; pd = pa + 36
        m18, s18 = magic(18, 36 * 31 + 63)
        e("s_lshr_b32 s%d, s2, 3" % s_qs)
        e("s_lshl_b32 s%d, s%d, 6" % (s_qs + 1, s_qs))
        e("v_add_u32 v%d, s%d, v%d" % (px, s_qs + 1, lane))
        e("v_mul_u32_u24 v%d, 1152, v%d" % (px, px))
        e("s_mul_i32 s%d, s%d, 36" % (s_qs + 1, s_qs))
        e("v_add_u32 v%d, s%d, v%d" % (pl, s_qs + 1, lane))
        e("v_mul_u32_u24 v%d, %d, v%d" % (pr, m18, pl))
        e("v_lshrrev_b32 v%d, %d, v%d" % (pr, s18, pr))
        e("v_mul_u32_u24 v%d, 18, v%d" % (pq, pr))
        e("v_sub_u32 v%d, v%d, v%d" % (pl, pl, pq))
        e("v_mul_u32_u24 v%d, 18432, v%d" % (pq, pr))
        e("v_lshl_add_u32 v%d, v%d, 7, v%d" % (pq, pl, pq))
        e("s_and_b32 s%d, s2, 7" % s_pfq)
        e("s_mul_i32 s%d, s%d, 2304" % (s_pfq, s_pfq))
        e("v_mov_b32 v%d, v%d" % (m_px, px))
        e("v_mov_b32 v%d, v%d" % (m_pq, pq))
        npf = [0]
        def touch(gg, wsel):
            lab = "L_pf_%d" % npf[0]; npf[0] += 1
            e("s_cmp_lg_u32 s%d, %d" % (s_w, wsel))
            e("s_cbranch_scc1 %s" % lab)
            e("buffer_load_dword v%d, v%d, s[%d:%d], 0 offen offset:%d" % (m_pd, m_px, S_X, S_X + 3, gg * 128))
            e("s_add_u32 s%d, s%d, %d" % (s_pfq + 1, s_pfq, gg * 64 * 18432))
            e("buffer_load_dword v%d, v%d, s[%d:%d], s%d offen" % (m_pd, m_pq, S_Q, S_Q + 3, s_pfq + 1))
            g.label(lab)
        g.need(("sz",))
        PFD = cfg.get("pfd", 4)
        for gg in range(2, PFD): touch(gg, gg % 4)
    g.need(("sz",))
    e("v_cmp_gt_u32 vcc, 216, v0")
    e("s_and_saveexec_b64 s[%d:%d], vcc" % (s_sv, s_sv + 1))
    e("s_mov_b64 s[%d:%d], 0" % (s_bad, s_bad + 1))
    for i in range(3):
        e("v_lshlrev_b32 v%d, 16, v%d" % (sl, pa + i))
        e("v_and_b32 v%d, 0xffff0000, v%d" % (sh_, pa + i))
        e("v_lshlrev_b32 v%d, 16, v%d" % (zl, pa + 3 + i))
        e("v_and_b32 v%d, 0xffff0000, v%d" % (zh, pa + 3 + i))
        e("v_mul_f32 v%d, s%d, v%d" % (o4, s_c24, sl))
        e("v_mul_f32_e64 v%d, -v%d, v%d" % (o4 + 1, zl, sl))
        e("v_mul_f32 v%d, s%d, v%d" % (o4 + 2, s_c24, sh_))
        e("v_mul_f32_e64 v%d, -v%d, v%d" % (o4 + 3, zh, sh_))
        g.ds("ds_write_b128 v%d, v[%d:%d] offset:%d" % (v_tw, o4, o4 + 3, TAB + i * 3 * 1152), "tab")
        for (sv, zv) in ((sl, zl), (sh_, zh)):
            e("v_rndne_f32 v%d, v%d" % (tt, zv))
            e("v_cmp_neq_f32 vcc, v%d, v%d" % (tt, zv))
            e("s_or_b64 s[%d:%d], s[%d:%d], vcc" % (s_bad, s_bad + 1, s_bad, s_bad + 1))
            e("v_and_b32 v%d, 0x7fffffff, v%d" % (tt, zv))
            e("v_cmp_lt_u32 vcc, 0x43000000, v%d" % tt)
            e("s_or_b64 s[%d:%d], s[%d:%d], vcc" % (s_bad, s_bad + 1, s_bad, s_bad + 1))
            e("v_and_b32 v%d, 0x7fffffff, v%d" % (tt, sv))
            e("v_cmp_ne_u32 s[%d:%d], 0, v%d" % (s_os, s_os + 1, tt))
            e("v_subrev_u32 v%d, %d, v%d" % (tt, 27 << 23, tt))
            e("v_cmp_le_u32 vcc, %d, v%d" % (200 << 23, tt))
            e("s_and_b64 vcc, vcc, s[%d:%d]" % (s_os, s_os + 1))
            e("s_or_b64 s[%d:%d], s[%d:%d], vcc" % (s_bad, s_bad + 1, s_bad, s_bad + 1))
        g.need((), ("tab",))
    e("s_mov_b64 exec, s[%d:%d]" % (s_sv, s_sv + 1))
    e("s_cmp_lg_u64 s[%d:%d], 0" % (s_bad, s_bad + 1))
    e("s_cselect_b32 s%d, 1, 0" % s_os)
    e("s_lshl_b32 s%d, s%d, 2" % (s_os + 1, s_w))
    e("v_mov_b32 v%d, s%d" % (tt, s_os))
    e("v_mov_b32 v%d, s%d" % (tt + 1, s_os + 1))
    g.ds("ds_write_b32 v%d, v%d offset:%d" % (tt + 1, tt, FLAGS), "tab")
    e("v_mov_b32 v20, 0")
    g.need((), ("tab",))
    e("s_barrier")
    g.ds("ds_read_b128 v[16:19], v20 offset:%d" % FLAGS, "flag")
    g.need((), ("flag",))
    e("v_or_b32 v16, v16, v17")
    e("v_or3_b32 v16, v16, v18, v19")
    e("s_nop 0")
    e("v_readfirstlane_b32 s%d, v16" % s_os)
    e("s_cmp_eq_u32 s%d, 0" % s_os)
    e("s_cbranch_scc1 L_m_fast")
    e("s_barrier")
    e("v_cmp_gt_u32 vcc, 216, v0")
    e("s_and_saveexec_b64 s[%d:%d], vcc" % (s_sv, s_sv + 1))
    for i in range(3):
        e("v_lshlrev_b32 v%d, 16, v%d" % (o4, pa + i))
        e("v_and_b32 v%d, 0xffff0000, v%d" % (o4 + 2, pa + i))
        e("v_lshlrev_b32 v%d, 16, v%d" % (o4 + 1, pa + 3 + i))
        e("v_and_b32 v%d, 0xffff0000, v%d" % (o4 + 3, pa + 3 + i))
        e("v_xor_b32 v%d, 0x80000000, v%d" % (o4 + 1, o4 + 1))
        e("v_xor_b32 v%d, 0x80000000, v%d" % (o4 + 3, o4 + 3))
        g.ds("ds_write_b128 v%d, v[%d:%d] offset:%d" % (v_tw, o4, o4 + 3, TAB + i * 3 * 1152), "tab")
        g.need((), ("tab",))
    e("s_mov_b64 exec, s[%d:%d]" % (s_sv, s_sv + 1))
    e("s_barrier")
    e("s_barrier")
    g.label("L_m_fast")
    def xfrag_reads(gg, s):
        out = []
        for mt in range(4):
            b = a_x + s * 16 + mt * 4
            out.append(("ds", "ds_read_b128 a[%d:%d], v%d offset:%d" % (b, b + 3, m_xr[s], (gg % XR) * XSL + mt * 2048), "xf%d_%d" % (gg, s)))
        return out
    def stores(mt, early=False):
        out = []
        cfg["stm"] = cfg.get("stm_early", "") if early else cfg.get("stm_late", "")
        for r in range(4):
            tq = m_tmp + r * 4
            for h in range(4):
                out.append(("v", "v_cvt_pk_bf16_f32 v%d, v%d, v%d" % (tq + h, accreg(mt, 2 * h) + r, accreg(mt, 2 * h + 1) + r)))
            out.append(("s", "s_add_u32 s%d, s%d, %d" % (s_os, s_oo, (mt * 16 + r) * 9216)))
            out.append(("vm", "buffer_store_dwordx4 v[%d:%d], v%d, s[%d:%d], s%d offen%s" % (tq, tq + 3, m_oa, S_O, S_O + 3, s_os, cfg.get("stm", "")), "st"))
        b = accreg(mt, 8)
        for rp in range(2):
            td = m_tmp + 24 + (mt * 2 + rp) % 4
            out.append(("v", "v_cvt_pk_bf16_f32 v%d, v%d, v%d" % (td, b + 2 * rp, b + 2 * rp + 1)))
            out.append(("s", "s_add_u32 s%d, s%d, %d" % (s_os, s_oo, (mt * 16 + 2 * rp) * 9216)))
            out.append(("vm", "buffer_store_short v%d, v%d, s[%d:%d], s%d offen offset:256%s" % (td, m_ob, S_O, S_O + 3, s_os, cfg.get("stm", "")), "st"))
            out.append(("s", "s_add_u32 s%d, s%d, %d" % (s_os, s_oo, (mt * 16 + 2 * rp + 1) * 9216)))
            out.append(("vm", "buffer_store_short_d16_hi v%d, v%d, s[%d:%d], s%d offen offset:256%s" % (td, m_ob, S_O, S_O + 3, s_os, cfg.get("stm", "")), "st"))
        return out
    LS = cfg.get("lastsplit", 2)
    mtsets = {1: [(0, 1, 2, 3)], 2: [(0, 1), (2, 3)], 4: [(0,), (1,), (2,), (3,)]}[LS]
    frags = [(j, s, t, (0, 1, 2, 3)) for j in range(NG - 1) for s in range(2) for t in range(T)]
    frags += [(NG - 1, s, t, ms) for ms in mtsets for s in range(2) for t in range(T)]
    def frag_read(fi):
        j, s, t, _ = frags[fi]
        b = a_fr + (fi % FR) * 4
        xv = (2 * s) ^ ((t >> 2) if t < 8 else 0)
        return ("ds", "ds_read_b128 a[%d:%d], v%d offset:%d" % (b, b + 3, m_r[xv], WB + (j % 2) * SLOT + t * 2048), "f%d" % fi)
    PF = FR - 1
    emit_items(xfrag_reads(0, 0))
    nfr = 0
    for fi in range(PF):
        emit_item(frag_read(fi)); nfr += 1
    P = []; ST = []; stdelay = 0
    prevj = -1; fl = 0; prevms = None
    for fi, (j, s, t, ms) in enumerate(frags):
        if j != prevj:
            emit_items(P); P = []
            if stamp == 1: e("s_memtime s[%d:%d]" % (STAMP0 + 2 + 2 * j, STAMP0 + 3 + 2 * j))
            P = xfrag_reads(j, 1)
            fl = 0; prevj = j
            if cfg.get("pf", 1) == 1 and j + cfg.get("pfd", 4) < NG: touch(j + cfg.get("pfd", 4), j % 4)
        if j == NG - 1 and prevms is not None and ms != prevms:
            for mt in prevms: ST += stores(mt, True)
            stdelay = 6
        prevms = ms if j == NG - 1 else None
        fb = a_fr + (fi % FR) * 4
        if fl == BARF and j + 1 < NG:
            assert nfr >= (j + 1) * 2 * T, (nfr, j)
            g.need((), ("f%d" % ((j + 1) * 2 * T - 1),))
            e("s_barrier")
            P += xfrag_reads(j + 1, 0)
        for mt in ms:
            ab = accreg(mt, t)
            accs = "v[%d:%d]" % (ab, ab + 3)
            g.need((), ("f%d" % fi, "xf%d_%d" % (j, s)))
            csrc = "0" if (j == 0 and s == 0) else accs
            xb_ = a_x + s * 16 + mt * 4
            e("v_mfma_f32_16x16x32_bf16 %s, a[%d:%d], a[%d:%d], %s" % (accs, xb_, xb_ + 3, fb, fb + 3, csrc))
            cnt = 0
            if nfr < len(frags) and nfr <= fi + PF and (frags[nfr][0] == j or fl >= BARF):
                emit_item(frag_read(nfr)); nfr += 1; cnt += 1
            while P and cnt < (2 if len(ms) == 1 else 1):
                emit_item(P.pop(0)); cnt += 1
            if stdelay: stdelay -= 1
            else:
                while ST and (cnt < 2 or ST[0][0] == "s"):
                    it = ST.pop(0); emit_item(it); cnt += (it[0] != "s")
        fl += 1
    emit_items(P)
    emit_items(ST)
    e("s_nop 7")
    e("s_nop 1")
    for mt in prevms: emit_items(stores(mt))
    if stamp: dump_stamps(cfg.get("stw", 0))
    e("s_endpgm")

    g.label("L_helper")
    g.vmq = []; g.lgq = []
    hst = [1]
    def hs():
        if stamp == 3:
            e("s_memtime s[%d:%d]" % (STAMP0 + 2 * hst[0], STAMP0 + 1 + 2 * hst[0])); hst[0] += 1
    e("s_mul_i32 s%d, s%d, 1152" % (s_xo, s_t0))
    for rb in range(1, 8):
        e("s_add_u32 s%d, s%d, %d" % (s_xo + rb, s_xo, rb * 8 * 1152))
    e("s_mul_i32 s%d, s%d, 576" % (s_q0, s_nblk))
    e("s_mov_b32 s%d, 0x4b800000" % s_c24)
    lane = h_tmp + 1; kg = h_tmp + 2; kb = h_tmp + 4; nb = h_tmp + 5; t7 = h_tmp + 7
    k8 = h_tmp + 8; nq_ = h_tmp + 9; hh = h_tmp + 10; ii = h_tmp + 11; t12 = h_tmp + 12; tl = h_tl
    e("v_and_b32 v%d, 63, v0" % lane)
    e("v_and_b32 v%d, 255, v0" % tl)
    e("v_lshrrev_b32 v%d, 4, v%d" % (kb, tl))
    e("v_and_b32 v%d, 15, v0" % nb)
    e("v_lshrrev_b32 v%d, 4, v%d" % (kg, lane))
    e("v_lshrrev_b32 v%d, 3, v%d" % (t7, lane))
    e("v_mul_u32_u24 v%d, 1152, v%d" % (h_xd[0], t7))
    e("v_and_b32 v%d, 7, v%d" % (t7, lane))
    e("v_xor_b32 v%d, v%d, v%d" % (t7, t7, kg))
    e("v_lshl_add_u32 v%d, v%d, 4, v%d" % (h_xd[0], t7, h_xd[0]))
    e("v_xor_b32 v%d, 64, v%d" % (h_xd[1], h_xd[0]))
    e("v_mul_u32_u24 v%d, %d, v%d" % (h_qb, 4 * 18432, kb))
    e("v_lshl_add_u32 v%d, v%d, 2, v%d" % (h_qb, nb, h_qb))
    e("v_add_u32 v%d, 512, v%d" % (h_qb, h_qb))
    e("v_lshrrev_b32 v%d, 5, v%d" % (k8, tl))
    e("v_and_b32 v%d, 31, v0" % nq_)
    e("v_mul_u32_u24 v%d, %d, v%d" % (h_qa, 8 * 18432, k8))
    e("v_lshl_add_u32 v%d, v%d, 4, v%d" % (h_qa, nq_, h_qa))
    pa = h_pa
    e("s_waitcnt lgkmcnt(0)")
    hs()
    srd(S_X, 4, M * K * 2); srd(S_Q, 6, K * N * 4); srd(S_SC, 8, NG * N * 2); srd(S_Z, 10, NG * N * 2)
    def qreg(slot, r, ee):
        b = h_st + slot * 36
        return b + r * 4 + ee if ee < 4 else b + 32 + r
    def load_q(j):
        slot = j % NS
        out = []
        for r in range(8):
            b = qreg(slot, r, 0)
            out.append(("s", "s_add_u32 s%d, s%d, %d" % (s_qs, s_q0, (j * 64 + r) * 18432)))
            out.append(("vm", "buffer_load_dwordx4 v[%d:%d], v%d, s[%d:%d], s%d offen%s" % (b, b + 3, h_qa, S_Q, S_Q + 3, s_qs, cfg.get("qm", "")), "q%d" % j))
        for r in range(4):
            out.append(("s", "s_add_u32 s%d, s%d, %d" % (s_qs + 1, s_q0, (j * 64 + r) * 18432)))
            out.append(("vm", "buffer_load_dword v%d, v%d, s[%d:%d], s%d offen%s" % (qreg(slot, r, 4), h_qb, S_Q, S_Q + 3, s_qs + 1, cfg.get("qm", "")), "q%d" % j))
        return out
    def dma_x(gg):
        res = []
        for rb in range(8):
            c = (gg % XR) * XSL + rb * 1024 - gg * 128
            if c >= 0: res.append(("s", "s_add_u32 m0, s%d, %d" % (s_xw, c)))
            else: res.append(("s", "s_sub_u32 m0, s%d, %d" % (s_xw, -c)))
            res.append(("s", "s_nop 0"))
            res.append(("vm", "buffer_load_dwordx4 v%d, s[%d:%d], s%d offen offset:%d%s lds" % (h_xd[rb & 1], S_X, S_X + 3, s_xo + rb, gg * 128, cfg.get("xm", "")), "x%d" % gg))
        return res
    d0 = pa + 16
    e("v_lshlrev_b32 v%d, 3, v%d" % (t7, nq_))
    e("v_lshl_add_u32 v%d, v%d, 1, 0" % (t12, nb))
    g.vm("buffer_load_dwordx2 v[%d:%d], v%d, s[%d:%d], s%d offen" % (d0, d0 + 1, t7, S_SC, S_SC + 3, s_t1), "d0")
    g.vm("buffer_load_dwordx2 v[%d:%d], v%d, s[%d:%d], s%d offen" % (d0 + 2, d0 + 3, t7, S_Z, S_Z + 3, s_t1), "d0")
    g.vm("buffer_load_ushort v%d, v%d, s[%d:%d], s%d offen offset:256" % (d0 + 4, t12, S_SC, S_SC + 3, s_t1), "d0")
    g.vm("buffer_load_ushort v%d, v%d, s[%d:%d], s%d offen offset:256" % (d0 + 5, t12, S_Z, S_Z + 3, s_t1), "d0")
    emit_items(load_q(0)); nq = 1
    emit_items(dma_x(0)); nx = 1
    if cfg.get("early", 1): emit_items(load_q(1)); nq = 2
    if cfg.get("pf", 1) == 3:
        emit_items(load_q(1)); nq = 2
        emit_items(dma_x(1)); nx = 2
        px = pa + 0; pq = pa + 1; pl = pa + 2; pr = pa + 3; pd = pa + 4
        m18, s18 = magic(18, 36 * 31 + 63)
        e("s_lshr_b32 s%d, s2, 3" % s_t2)
        e("s_lshl_b32 s%d, s%d, 6" % (s_t3, s_t2))
        e("v_add_u32 v%d, s%d, v%d" % (px, s_t3, lane))
        e("v_mul_u32_u24 v%d, 1152, v%d" % (px, px))
        e("s_mul_i32 s%d, s%d, 36" % (s_t3, s_t2))
        e("v_add_u32 v%d, s%d, v%d" % (pl, s_t3, lane))
        e("v_mul_u32_u24 v%d, %d, v%d" % (pr, m18, pl))
        e("v_lshrrev_b32 v%d, %d, v%d" % (pr, s18, pr))
        e("v_mul_u32_u24 v%d, 18, v%d" % (pq, pr))
        e("v_sub_u32 v%d, v%d, v%d" % (pl, pl, pq))
        e("v_mul_u32_u24 v%d, 18432, v%d" % (pq, pr))
        e("v_lshl_add_u32 v%d, v%d, 7, v%d" % (pq, pl, pq))
        e("s_and_b32 s%d, s2, 7" % s_t2)
        e("s_mul_i32 s%d, s%d, 2304" % (s_t2, s_t2))
        e("s_and_b32 s%d, s%d, 3" % (s_t3, s_w))
        e("s_mul_i32 s%d, s%d, %d" % (s_os, s_t3, 64 * 18432))
        e("s_add_u32 s%d, s%d, s%d" % (s_t2, s_t2, s_os))
        e("s_lshl_b32 s%d, s%d, 7" % (s_t3, s_t3))
        for rep in range(2):
            g0 = 2 + 4 * rep
            g.vm("buffer_load_dword v%d, v%d, s[%d:%d], s%d offen offset:%d" % (pd, px, S_X, S_X + 3, s_t3, g0 * 128), "pf")
            e("s_add_u32 s%d, s%d, %d" % (s_os, s_t2, g0 * 64 * 18432))
            g.vm("buffer_load_dword v%d, v%d, s[%d:%d], s%d offen" % (pd + 1, pq, S_Q, S_Q + 3, s_os), "pf")
    hs()
    e("v_lshrrev_b32 v%d, 1, v%d" % (hh, nb))
    e("v_and_b32 v%d, 1, v%d" % (t7, nb))
    e("v_lshlrev_b32 v%d, 2, v%d" % (t7, t7))
    e("v_xor_b32 v%d, v%d, v%d" % (hh, hh, t7))
    e("v_lshrrev_b32 v%d, 1, v%d" % (t7, kb))
    e("v_xor_b32 v%d, v%d, v%d" % (t7, t7, hh))
    e("v_lshlrev_b32 v%d, 4, v%d" % (t7, t7))
    e("v_lshl_add_u32 v%d, v%d, 7, v%d" % (h_wb, nb, t7))
    e("v_and_b32 v%d, 1, v%d" % (t7, kb))
    e("v_lshl_add_u32 v%d, v%d, 3, v%d" % (h_wb, t7, h_wb))
    e("v_lshrrev_b32 v%d, 1, v%d" % (ii, nq_))
    e("v_lshrrev_b32 v%d, 1, v%d" % (hh, ii))
    e("v_and_b32 v%d, 1, v%d" % (t7, ii))
    e("v_lshlrev_b32 v%d, 2, v%d" % (t7, t7))
    e("v_xor_b32 v%d, v%d, v%d" % (hh, hh, t7))
    e("v_and_b32 v%d, 1, v%d" % (t12, nq_))
    e("v_lshlrev_b32 v%d, 1, v%d" % (t7, t12))
    e("v_xor_b32 v%d, v%d, v%d" % (hh, hh, t7))
    e("v_xor_b32 v%d, v%d, v%d" % (hh, hh, k8))
    e("v_lshlrev_b32 v%d, 4, v%d" % (hh, hh))
    e("v_lshl_add_u32 v%d, v%d, 6, v%d" % (t7, t12, ii))
    e("v_lshl_add_u32 v%d, v%d, 7, v%d" % (h_wa, t7, hh))
    e("v_lshlrev_b32 v%d, 5, v%d" % (h_sa, nq_))
    e("v_lshlrev_b32 v%d, 3, v%d" % (h_sb, nb))
    sl, sh_, zl, zh = pa + 12, pa + 13, pa + 14, pa + 15
    o4 = pa + 24; tt = pa + 28
    def scale_reads(j):
        out = []
        off0 = TAB + j * 1152
        for h in range(2):
            out.append(("ds", "ds_read_b128 v[%d:%d], v%d offset:%d" % (h_sc + 4 * h, h_sc + 4 * h + 3, h_sa, off0 + 16 * h), "sc%d" % j))
        out.append(("ds", "ds_read_b64 v[%d:%d], v%d offset:%d" % (h_sc + 8, h_sc + 9, h_sb, off0 + 1024), "sc%d" % j))
        return out
    def dq_elem(generic, f, q, c1, c0, dep):
        if not generic:
            return [("v", "v_fma_mix_f32 v%d, v%d, v%d, v%d op_sel_hi:[1,0,0]" % (f, q, c1, c0)) + dep]
        return [("v", "v_cvt_f32_i32 v%d, v%d" % (f, q)) + dep,
                ("v", "v_cvt_pk_bf16_f32 v%d, 0, v%d" % (f, f)),
                ("v", "v_add_f32 v%d, v%d, v%d" % (f, f, c0)),
                ("v", "v_cvt_pk_bf16_f32 v%d, 0, v%d" % (f, f)),
                ("v", "v_mul_f32 v%d, v%d, v%d" % (f, f, c1))]
    def dequant(j, generic):
        slot = j % NS
        out = []; first = True; pend = []
        for ee in range(5):
            f = h_tmp + (ee % 2) * 8
            c1 = h_sc + 2 * ee; c0 = c1 + 1
            nr = 8 if ee < 4 else 4
            for r in range(nr):
                dep = ((("q%d" % j,), ("sc%d" % j,)),) if first else ()
                first = False
                out += dq_elem(generic, f + r, qreg(slot, r, ee), c1, c0, dep)
                if r == 1 and pend: out.append(pend.pop(0))
            for h in range(nr // 2):
                out.append(("v", "v_cvt_pk_bf16_f32 v%d, v%d, v%d" % (f + h, f + 2 * h, f + 2 * h + 1)))
            if ee < 4:
                pend.append(("ds", "ds_write_b128 v%d, v[%d:%d] offset:%d" % (h_wa, f, f + 3, WB + (j % 2) * SLOT + ee * 2048), "w%d" % j))
            else:
                pend.append(("ds", "ds_write_b64 v%d, v[%d:%d] offset:%d" % (h_wb, f, f + 1, WB + (j % 2) * SLOT + 8 * 2048), "w%d" % j))
        out += pend
        return out
    g.need(("d0",))
    hs()
    for ee in range(5):
        if ee < 4:
            sp = d0 + ee // 2; zp = d0 + 2 + ee // 2
            if ee % 2 == 0:
                e("v_lshlrev_b32 v%d, 16, v%d" % (sl, sp)); e("v_lshlrev_b32 v%d, 16, v%d" % (zl, zp))
            else:
                e("v_and_b32 v%d, 0xffff0000, v%d" % (sl, sp)); e("v_and_b32 v%d, 0xffff0000, v%d" % (zl, zp))
        else:
            e("v_lshlrev_b32 v%d, 16, v%d" % (sl, d0 + 4)); e("v_lshlrev_b32 v%d, 16, v%d" % (zl, d0 + 5))
        e("v_mul_f32 v%d, s%d, v%d" % (h_sc + 2 * ee, s_c24, sl))
        e("v_mul_f32_e64 v%d, -v%d, v%d" % (h_sc + 2 * ee + 1, zl, sl))
    g.need(("q0",))
    hs()
    D = dequant(0, False)
    V = []
    if nq < 2: V += load_q(1); nq = 2
    if nx < 2: V += dma_x(1); nx = 2
    while D:
        while V and V[0][0] == "s": emit_item(V.pop(0))
        if V: emit_item(V.pop(0))
        for _ in range(3):
            if D: emit_item(D.pop(0))
    hs()
    emit_items(V)
    hs()
    g.need(("x0",), ("w0",))
    hs()
    e("s_barrier")
    hs()
    e("v_mov_b32 v%d, 0" % tt)
    g.ds("ds_read_b128 v[%d:%d], v%d offset:%d" % (o4, o4 + 3, tt, FLAGS), "flag")
    if nq < 2: emit_items(load_q(1)); nq = 2
    if nx < 2: emit_items(dma_x(1)); nx = 2
    g.need((), ("flag",))
    e("v_or_b32 v%d, v%d, v%d" % (o4, o4, o4 + 1))
    e("v_or3_b32 v%d, v%d, v%d, v%d" % (o4, o4, o4 + 2, o4 + 3))
    e("s_nop 0")
    e("v_readfirstlane_b32 s%d, v%d" % (s_os, o4))
    e("s_cmp_lg_u32 s%d, 0" % s_os)
    e("s_cbranch_scc1 L_h_generic")
    saved = (list(g.vmq), list(g.lgq), nq, nx)
    def hbody(generic):
        g.vmq, g.lgq = list(saved[0]), list(saved[1])
        nq, nx = saved[2], saved[3]
        if generic:
            e("s_barrier")
            e("s_barrier")
            emit_items(scale_reads(0))
            emit_items(dequant(0, True))
            g.need((), ("w0",))
            e("s_barrier")
        emit_items(scale_reads(1))
        V = []
        for j in range(NG - 1):
            if stamp == 1 and not generic: e("s_memtime s[%d:%d]" % (STAMP0 + 2 + 2 * j, STAMP0 + 3 + 2 * j))
            if stamp == 3 and not generic and j in (0, 1): hs()
            D = dequant(j + 1, generic)
            while True:
                added = False
                if nq < NG and nq <= j + NS and nq <= nx + 0:
                    V += load_q(nq); nq += 1; added = True
                elif nx < NG and nx <= j + 2:
                    V += dma_x(nx); nx += 1; added = True
                elif nq < NG and nq <= j + NS:
                    V += load_q(nq); nq += 1; added = True
                if not added: break
            per = cfg.get("ratio", 3) * (5 if generic else 1)
            while any(it[0] == "vm" and it[2] == "q%d" % (j + 1) for it in V):
                emit_item(V.pop(0))
            while D:
                while V and V[0][0] == "s": emit_item(V.pop(0))
                if V: emit_item(V.pop(0))
                for _ in range(per):
                    if D: emit_item(D.pop(0))
            while any(it[0] == "vm" and it[2] == "x%d" % (j + 1) for it in V):
                emit_item(V.pop(0))
            if j == NG - 2: emit_items(V); V = []
            if j + 2 < NG: emit_items(scale_reads(j + 2))
            g.need(("x%d" % (j + 1),), ("w%d" % (j + 1),))
            e("s_barrier")
        if stamp and not generic: dump_stamps(cfg.get("stw", 0))
        e("s_endpgm")
    hbody(False)
    g.label("L_h_generic")
    hbody(True)
    g.label("L_end")
    e("s_endpgm")
    tail = ['.section .rodata,"a"', ".p2align 6", ".amdhsa_kernel %s" % KNAME,
            "  .amdhsa_next_free_vgpr %d" % (ACCOFF + NAG), "  .amdhsa_next_free_sgpr 102", "  .amdhsa_accum_offset %d" % ACCOFF,
            "  .amdhsa_group_segment_fixed_size 0", "  .amdhsa_kernarg_size 56", "  .amdhsa_user_sgpr_count 2",
            "  .amdhsa_user_sgpr_kernarg_segment_ptr 1", "  .amdhsa_system_sgpr_workgroup_id_x 1",
            "  .amdhsa_float_denorm_mode_32 3", "  .amdhsa_float_denorm_mode_16_64 3", ".end_amdhsa_kernel"]
    return "\n".join(hdr + g.L + tail) + "\n", ACCOFF + NAG, LDS_BYTES

if __name__ == "__main__":
    ap = argparse.ArgumentParser()
    ap.add_argument("--ns", type=int, default=3)
    ap.add_argument("--xr", type=int, default=3)
    ap.add_argument("--fr", type=int, default=6)
    ap.add_argument("--barf", type=int, default=14)
    ap.add_argument("--prio", type=int, default=1)
    ap.add_argument("--dis", default="")
    ap.add_argument("--pf", type=int, default=0)
    ap.add_argument("--early", type=int, default=0)
    ap.add_argument("--stm", default="")
    ap.add_argument("--qm", default="")
    ap.add_argument("--stme", default="")
    ap.add_argument("--xm", default="")
    ap.add_argument("--tlb", type=int, default=0)
    ap.add_argument("--pfd", type=int, default=4)
    ap.add_argument("--ratio", type=int, default=3)
    ap.add_argument("--lastsplit", type=int, default=2)
    ap.add_argument("--stamp", type=int, default=0)
    ap.add_argument("--stw", type=int, default=0)
    ap.add_argument("-o", default="standalone__weight_only_int_quip_2__prompt.s")
    a = ap.parse_args()
    cfg = dict(ns=a.ns, xr=a.xr, fr=a.fr, barf=a.barf, prio=a.prio, dis=a.dis, pf=a.pf, early=a.early, stm_early=(" " + a.stme.replace("+", " ")) if a.stme else "", stm_late=(" " + a.stm.replace("+", " ")) if a.stm else "", qm=(" " + a.qm.replace("+", " ")) if a.qm else "", xm=(" " + a.xm.replace("+", " ")) if a.xm else "", stm=(" " + a.stm.replace("+", " ")) if a.stm else "", tlb=a.tlb, pfd=a.pfd, ratio=a.ratio, lastsplit=a.lastsplit, stamp=a.stamp, stw=a.stw)
    s, nvg, lds = build(cfg)
    open(a.o, "w").write(s)
    print("regs", nvg, "LDS", lds, "lines", s.count("\n"))
```

```python
import sys, argparse

M, K, N = 2048, 576, 4608
NG = 9
KNAME = "standalone__weight_only_int_quip_2__prompt_kernel"

class Gen:
    def __init__(self):
        self.L = []; self.vmq = []; self.lgq = []
    def e(self, s): self.L.append("    " + s)
    def label(self, s): self.L.append(s + ":")
    def vm(self, s, tag):
        self.e(s); self.vmq.append(tag)
        assert len(self.vmq) <= 62, "too many VMEM outstanding: %d" % len(self.vmq)
    def ds(self, s, tag):
        self.e(s); self.lgq.append(tag)
    def need(self, vmtags=(), lgtags=()):
        w = []
        nv = None
        for t in vmtags:
            idx = [i for i, x in enumerate(self.vmq) if x == t]
            if idx:
                n = len(self.vmq) - 1 - idx[-1]
                nv = n if nv is None else min(nv, n)
        if nv is not None:
            self.vmq = self.vmq[len(self.vmq) - nv:] if nv else []
            w.append("vmcnt(%d)" % nv)
        nl = None
        for t in lgtags:
            idx = [i for i, x in enumerate(self.lgq) if x == t]
            if idx:
                n = len(self.lgq) - 1 - idx[-1]
                nl = n if nl is None else min(nl, n)
        if nl is not None:
            nl = min(nl, 15)
            self.lgq = self.lgq[len(self.lgq) - nl:] if nl else []
            w.append("lgkmcnt(%d)" % nl)
        if w: self.e("s_waitcnt " + " ".join(w))

def magic(d, maxv):
    for sh in range(8, 24):
        mul = ((1 << sh) + d - 1) // d
        if all(((v * mul) >> sh) == v // d for v in range(maxv + 1)):
            assert maxv * mul < (1 << 32) and mul < (1 << 24)
            return mul, sh
    raise Exception("no magic")

def build(cfg):
    NS = cfg["ns"]; XR = cfg["xr"]; FR = cfg["fr"]; BARF = cfg["barf"]
    T = 9
    SLOT = T * 2048
    WB = 0
    TAB = 2 * SLOT
    FLAGS = TAB + NG * 144 * 8
    XB = (FLAGS + 64 + 1023) // 1024 * 1024
    XSL = 8192
    LDS_BYTES = XB + 4 * XR * XSL
    assert LDS_BYTES <= 163840, LDS_BYTES
    ACCOFF = 200
    m_r = [1, 2, 3, 4]; m_xr = [5, 6]; m_oa = 7; m_ob = 8
    m_px, m_pq, m_pd = 9, 10, 11
    m_tmp = 12
    m_acc = 48
    def accreg(mt, t): return m_acc + (t * 4 + mt) * 4
    a_x = 0; a_fr = 32
    NAG = 32 + 4 * FR
    assert ACCOFF + NAG <= 256
    h_qa, h_qb, h_wa, h_wb, h_sa, h_sb = 1, 2, 3, 4, 5, 6
    h_xd = [7, 8]
    h_tl = 9
    h_tmp = 12
    h_sc = 28
    h_pa = 40
    h_st = 72 if NS <= 3 else 56
    if NS > 3: h_pa = 40
    assert h_st + NS * 36 <= ACCOFF, (h_st, NS)

    g = Gen(); e = g.e
    hdr = ["; W4 dequant GEMM v5 (4 MFMA + 4 helper waves), generated by gen/gen9.py cfg=%s" % (cfg,),
           "; @launch grid=(256,1,1) block=(512,1,1) lds=%d" % LDS_BYTES,
           '.amdgcn_target "amdgcn-amd-amdhsa--gfx950"', ".text", ".globl %s" % KNAME, ".p2align 8",
           ".type %s,@function" % KNAME, "%s:" % KNAME]
    S_X, S_Q, S_SC, S_Z, S_O = 16, 20, 24, 28, 32
    s_w = 36; s_nblk = 37; s_mblk = 38; s_xw = 39
    s_xo = 40
    s_oo = 48; s_q0 = 49
    s_t0, s_t1, s_t2, s_t3 = 50, 51, 52, 53
    s_qs = 54; s_os = 58
    s_bad = 60; s_sv = 62; s_c24 = 64; s_pfq = 44
    STAMP0 = 66
    stamp = cfg.get("stamp", 0)
    dis = cfg.get("dis", "")
    if stamp: e("s_memtime s[%d:%d]" % (STAMP0, STAMP0 + 1))
    e("s_cmp_ge_u32 s2, 256")
    e("s_cbranch_scc1 L_end")
    e("s_load_dwordx4 s[4:7], s[0:1], 0")
    e("s_load_dwordx4 s[8:11], s[0:1], 16")
    e("s_load_dwordx2 s[12:13], s[0:1], 32")
    if cfg.get("perm"):
        e("s_mul_i32 s2, s2, 37")
        e("s_lshr_b32 s3, s2, 3")
        e("s_xor_b32 s2, s2, s3")
        e("s_xor_b32 s2, s2, s3")
        e("s_and_b32 s2, s2, 255")
        e("s_lshr_b32 s3, s2, 5")
        e("s_lshl_b32 s2, s2, 3")
        e("s_or_b32 s2, s2, s3")
        e("s_and_b32 s2, s2, 255")
    e("v_lshrrev_b32 v12, 6, v0")
    e("s_and_b32 s%d, s2, 7" % s_t0)
    e("s_lshr_b32 s%d, s2, 3" % s_t1)
    e("v_readfirstlane_b32 s%d, v12" % s_w)
    mp = cfg.get("map", 0)
    if mp == 0:
        e("s_and_b32 s%d, s%d, 3" % (s_t2, s_t1))
        e("s_lshl_b32 s%d, s%d, 2" % (s_nblk, s_t0))
        e("s_add_u32 s%d, s%d, s%d" % (s_nblk, s_nblk, s_t2))
        e("s_lshr_b32 s%d, s%d, 2" % (s_mblk, s_t1))
    elif mp == 1:
        e("s_and_b32 s%d, s%d, 3" % (s_t2, s_t0))
        e("s_lshl_b32 s%d, s%d, 3" % (s_nblk, s_t2))
        e("s_and_b32 s%d, s%d, 7" % (s_t2, s_t1))
        e("s_add_u32 s%d, s%d, s%d" % (s_nblk, s_nblk, s_t2))
        e("s_lshr_b32 s%d, s%d, 2" % (s_mblk, s_t0))
        e("s_lshl_b32 s%d, s%d, 2" % (s_mblk, s_mblk))
        e("s_lshr_b32 s%d, s%d, 3" % (s_t2, s_t1))
        e("s_add_u32 s%d, s%d, s%d" % (s_mblk, s_mblk, s_t2))
    elif mp == 2:
        e("s_and_b32 s%d, s2, 31" % s_nblk)
        e("s_lshr_b32 s%d, s2, 5" % s_mblk)
    elif mp == 3:
        e("s_and_b32 s%d, s%d, 1" % (s_t2, s_t0))
        e("s_lshl_b32 s%d, s%d, 4" % (s_nblk, s_t2))
        e("s_and_b32 s%d, s%d, 15" % (s_t2, s_t1))
        e("s_add_u32 s%d, s%d, s%d" % (s_nblk, s_nblk, s_t2))
        e("s_lshr_b32 s%d, s%d, 1" % (s_mblk, s_t0))
        e("s_lshl_b32 s%d, s%d, 1" % (s_mblk, s_mblk))
        e("s_lshr_b32 s%d, s%d, 4" % (s_t2, s_t1))
        e("s_add_u32 s%d, s%d, s%d" % (s_mblk, s_mblk, s_t2))
    elif mp == 4:
        e("s_and_b32 s%d, s%d, 7" % (s_t2, s_t1))
        e("s_lshl_b32 s%d, s%d, 2" % (s_nblk, s_t2))
        e("s_and_b32 s%d, s%d, 3" % (s_t2, s_t0))
        e("s_add_u32 s%d, s%d, s%d" % (s_nblk, s_nblk, s_t2))
        e("s_lshr_b32 s%d, s%d, 3" % (s_mblk, s_t1))
        e("s_lshl_b32 s%d, s%d, 1" % (s_mblk, s_mblk))
        e("s_lshr_b32 s%d, s%d, 2" % (s_t2, s_t0))
        e("s_add_u32 s%d, s%d, s%d" % (s_mblk, s_mblk, s_t2))
    e("s_lshl_b32 s%d, s%d, 8" % (s_t0, s_mblk))
    e("s_and_b32 s%d, s%d, 3" % (s_t3, s_w))
    e("s_lshl_b32 s%d, s%d, 6" % (s_t1, s_t3))
    e("s_add_u32 s%d, s%d, s%d" % (s_t0, s_t0, s_t1))
    e("s_mul_i32 s%d, s%d, %d" % (s_xw, s_t3, XR * XSL))
    e("s_add_u32 s%d, s%d, %d" % (s_xw, s_xw, XB))
    e("s_mul_i32 s%d, s%d, 288" % (s_t1, s_nblk))
    e("s_cmp_ge_u32 s%d, 4" % s_w)
    e("s_cbranch_scc1 L_helper")

    def srd(sd, sp, nbytes):
        e("s_mov_b32 s%d, s%d" % (sd, sp))
        e("s_and_b32 s%d, s%d, 0xffff" % (sd + 1, sp + 1))
        e("s_mov_b32 s%d, %d" % (sd + 2, nbytes))
        e("s_mov_b32 s%d, 0x00020000" % (sd + 3))
    def emit_item(it):
        k = it[0]
        if k == "vm" and it[2].startswith("x") and "x" in dis: return
        if k == "vm" and it[2].startswith("q") and "q" in dis: return
        if k == "vm" and it[2].startswith("st") and "s" in dis: return
        if k in ("s", "v"):
            if len(it) > 2: g.need(*it[2])
            e(it[1])
        elif k == "vm":
            if len(it) > 3: g.need(*it[3])
            g.vm(it[1], it[2])
        elif k == "ds":
            if len(it) > 3: g.need(*it[3])
            g.ds(it[1], it[2])
        else: raise Exception(k)
    def emit_items(items):
        for it in items: emit_item(it)
    def dump_stamps(wsel):
        if stamp == 1:
            e("s_memtime s[%d:%d]" % (STAMP0 + 20, STAMP0 + 21))
            e("s_waitcnt vmcnt(0)")
            e("s_memtime s[%d:%d]" % (STAMP0 + 22, STAMP0 + 23))
        e("s_waitcnt lgkmcnt(0)")
        e("s_cmp_lg_u32 s2, 5")
        e("s_cbranch_scc1 L_end")
        e("s_cmp_lg_u32 s%d, %d" % (s_w, wsel))
        e("s_cbranch_scc1 L_end")
        e("s_load_dwordx2 s[4:5], s[0:1], 40")
        e("s_waitcnt lgkmcnt(0)")
        e("s_mov_b32 s6, 256")
        e("s_mov_b32 s7, 0x00020000")
        for i in range(11):
            e("s_sub_u32 s%d, s%d, s%d" % (STAMP0 + 2 + 2 * i, STAMP0 + 2 + 2 * i, STAMP0))
            e("v_mov_b32 v1, s%d" % (STAMP0 + 2 + 2 * i))
            e("v_mov_b32 v2, %d" % (4 * i))
            e("buffer_store_dword v1, v2, s[4:7], 0 offen")

    g.vmq = []; g.lgq = []
    if cfg.get("prio", 1): e("s_setprio %d" % cfg.get("prio", 1))
    e("s_mul_i32 s%d, s%d, 9216" % (s_oo, s_t0))
    e("s_add_u32 s%d, s%d, s%d" % (s_oo, s_oo, s_t1))
    lane, kg, nb, t7, hh = 12, 13, 14, 15, 16
    e("v_and_b32 v%d, 63, v0" % lane)
    e("v_and_b32 v%d, 15, v0" % nb)
    e("v_lshrrev_b32 v%d, 4, v%d" % (kg, lane))
    e("v_lshrrev_b32 v%d, 1, v%d" % (t7, nb))
    e("v_xor_b32 v%d, v%d, v%d" % (t7, kg, t7))
    e("v_lshlrev_b32 v%d, 4, v%d" % (t7, t7))
    e("v_lshl_add_u32 v%d, v%d, 7, v%d" % (m_xr[0], nb, t7))
    e("v_add_u32 v%d, s%d, v%d" % (m_xr[0], s_xw, m_xr[0]))
    e("v_xor_b32 v%d, 64, v%d" % (m_xr[1], m_xr[0]))
    e("v_lshrrev_b32 v%d, 1, v%d" % (hh, nb))
    e("v_and_b32 v%d, 1, v%d" % (t7, nb))
    e("v_lshlrev_b32 v%d, 2, v%d" % (t7, t7))
    e("v_xor_b32 v%d, v%d, v%d" % (hh, hh, t7))
    e("v_xor_b32 v%d, v%d, v%d" % (t7, kg, hh))
    e("v_lshlrev_b32 v%d, 4, v%d" % (t7, t7))
    e("v_lshl_add_u32 v%d, v%d, 7, v%d" % (m_r[0], nb, t7))
    for xx in range(1, 4):
        e("v_xor_b32 v%d, %d, v%d" % (m_r[xx], xx * 32, m_r[0]))
    e("v_mul_u32_u24 v%d, %d, v%d" % (m_ob, 4 * 9216, kg))
    e("v_lshl_add_u32 v%d, v%d, 4, v%d" % (m_oa, nb, m_ob))
    e("v_lshl_add_u32 v%d, v%d, 1, v%d" % (m_ob, nb, m_ob))
    mul72, sh72 = magic(72, 255)
    pa = m_acc
    gq = pa + 8; cp = pa + 9; szo = pa + 10; v_tw = pa + 6
    e("v_mul_u32_u24 v%d, %d, v0" % (gq, mul72))
    e("v_lshrrev_b32 v%d, %d, v%d" % (gq, sh72, gq))
    e("v_mul_u32_u24 v%d, 72, v%d" % (cp, gq))
    e("v_sub_u32 v%d, v0, v%d" % (cp, cp))
    e("v_mul_u32_u24 v%d, 9216, v%d" % (szo, gq))
    e("v_lshl_add_u32 v%d, v%d, 2, v%d" % (szo, cp, szo))
    e("v_mul_u32_u24 v%d, 1152, v%d" % (v_tw, gq))
    e("v_lshl_add_u32 v%d, v%d, 4, v%d" % (v_tw, cp, v_tw))
    e("s_add_u32 s%d, s%d, %d" % (s_t2, s_t1, 3 * 9216))
    e("s_add_u32 s%d, s%d, %d" % (s_t3, s_t1, 6 * 9216))
    e("s_mov_b32 s%d, 0x4b800000" % s_c24)
    e("s_waitcnt lgkmcnt(0)")
    srd(S_O, 12, M * N * 2); srd(S_SC, 8, NG * N * 2); srd(S_Z, 10, NG * N * 2)
    for i, so in enumerate((s_t1, s_t2, s_t3)):
        g.vm("buffer_load_dword v%d, v%d, s[%d:%d], s%d offen" % (pa + i, szo, S_SC, S_SC + 3, so), "sz")
        g.vm("buffer_load_dword v%d, v%d, s[%d:%d], s%d offen" % (pa + 3 + i, szo, S_Z, S_Z + 3, so), "sz")
    sl, sh_, zl, zh = pa + 12, pa + 13, pa + 14, pa + 15
    o4 = pa + 24; tt = pa + 28
    if cfg.get("tlb", 0):
        sh = cfg["tlb"]
        srd(S_X, 4, M * K * 2); srd(S_Q, 6, K * N * 4)
        e("v_lshlrev_b32 v%d, %d, v0" % (pa + 32, sh))
        for (sr, nbytes) in ((S_Q, K * N * 4), (S_X, M * K * 2), (S_O, M * N * 2)):
            nrep = (nbytes + (256 << sh) - 1) // (256 << sh)
            for rp in range(nrep):
                if rp: e("s_mov_b32 s%d, %d" % (s_qs, rp * (256 << sh)))
                g.vm("buffer_load_dword v%d, v%d, s[%d:%d], %s offen" % (pa + 33, pa + 32, sr, sr + 3, ("s%d" % s_qs) if rp else "0"), "tlb")
    if cfg.get("pf", 1) == 1:
        srd(S_X, 4, M * K * 2); srd(S_Q, 6, K * N * 4)
        px = pa + 32; pq = pa + 33; pl = pa + 34; pr = pa + 35; pd = pa + 36
        m18, s18 = magic(18, 36 * 31 + 63)
        e("s_lshr_b32 s%d, s2, 3" % s_qs)
        e("s_lshl_b32 s%d, s%d, 6" % (s_qs + 1, s_qs))
        e("v_add_u32 v%d, s%d, v%d" % (px, s_qs + 1, lane))
        e("v_mul_u32_u24 v%d, 1152, v%d" % (px, px))
        e("s_mul_i32 s%d, s%d, 36" % (s_qs + 1, s_qs))
        e("v_add_u32 v%d, s%d, v%d" % (pl, s_qs + 1, lane))
        e("v_mul_u32_u24 v%d, %d, v%d" % (pr, m18, pl))
        e("v_lshrrev_b32 v%d, %d, v%d" % (pr, s18, pr))
        e("v_mul_u32_u24 v%d, 18, v%d" % (pq, pr))
        e("v_sub_u32 v%d, v%d, v%d" % (pl, pl, pq))
        e("v_mul_u32_u24 v%d, 18432, v%d" % (pq, pr))
        e("v_lshl_add_u32 v%d, v%d, 7, v%d" % (pq, pl, pq))
        e("s_and_b32 s%d, s2, 7" % s_pfq)
        e("s_mul_i32 s%d, s%d, 2304" % (s_pfq, s_pfq))
        e("v_mov_b32 v%d, v%d" % (m_px, px))
        e("v_mov_b32 v%d, v%d" % (m_pq, pq))
        npf = [0]
        def touch(gg, wsel):
            lab = "L_pf_%d" % npf[0]; npf[0] += 1
            e("s_cmp_lg_u32 s%d, %d" % (s_w, wsel))
            e("s_cbranch_scc1 %s" % lab)
            e("buffer_load_dword v%d, v%d, s[%d:%d], 0 offen offset:%d" % (m_pd, m_px, S_X, S_X + 3, gg * 128))
            e("s_add_u32 s%d, s%d, %d" % (s_pfq + 1, s_pfq, gg * 64 * 18432))
            e("buffer_load_dword v%d, v%d, s[%d:%d], s%d offen" % (m_pd, m_pq, S_Q, S_Q + 3, s_pfq + 1))
            g.label(lab)
        g.need(("sz",))
        PFD = cfg.get("pfd", 4)
        for gg in range(2, PFD): touch(gg, gg % 4)
    g.need(("sz",))
    e("v_cmp_gt_u32 vcc, 216, v0")
    e("s_and_saveexec_b64 s[%d:%d], vcc" % (s_sv, s_sv + 1))
    e("s_mov_b64 s[%d:%d], 0" % (s_bad, s_bad + 1))
    for i in range(3):
        e("v_lshlrev_b32 v%d, 16, v%d" % (sl, pa + i))
        e("v_and_b32 v%d, 0xffff0000, v%d" % (sh_, pa + i))
        e("v_lshlrev_b32 v%d, 16, v%d" % (zl, pa + 3 + i))
        e("v_and_b32 v%d, 0xffff0000, v%d" % (zh, pa + 3 + i))
        e("v_mul_f32 v%d, s%d, v%d" % (o4, s_c24, sl))
        e("v_mul_f32_e64 v%d, -v%d, v%d" % (o4 + 1, zl, sl))
        e("v_mul_f32 v%d, s%d, v%d" % (o4 + 2, s_c24, sh_))
        e("v_mul_f32_e64 v%d, -v%d, v%d" % (o4 + 3, zh, sh_))
        g.ds("ds_write_b128 v%d, v[%d:%d] offset:%d" % (v_tw, o4, o4 + 3, TAB + i * 3 * 1152), "tab")
        for (sv, zv) in ((sl, zl), (sh_, zh)):
            e("v_rndne_f32 v%d, v%d" % (tt, zv))
            e("v_cmp_neq_f32 vcc, v%d, v%d" % (tt, zv))
            e("s_or_b64 s[%d:%d], s[%d:%d], vcc" % (s_bad, s_bad + 1, s_bad, s_bad + 1))
            e("v_and_b32 v%d, 0x7fffffff, v%d" % (tt, zv))
            e("v_cmp_lt_u32 vcc, 0x43000000, v%d" % tt)
            e("s_or_b64 s[%d:%d], s[%d:%d], vcc" % (s_bad, s_bad + 1, s_bad, s_bad + 1))
            e("v_and_b32 v%d, 0x7fffffff, v%d" % (tt, sv))
            e("v_cmp_ne_u32 s[%d:%d], 0, v%d" % (s_os, s_os + 1, tt))
            e("v_subrev_u32 v%d, %d, v%d" % (tt, 27 << 23, tt))
            e("v_cmp_le_u32 vcc, %d, v%d" % (200 << 23, tt))
            e("s_and_b64 vcc, vcc, s[%d:%d]" % (s_os, s_os + 1))
            e("s_or_b64 s[%d:%d], s[%d:%d], vcc" % (s_bad, s_bad + 1, s_bad, s_bad + 1))
        g.need((), ("tab",))
    e("s_mov_b64 exec, s[%d:%d]" % (s_sv, s_sv + 1))
    e("s_cmp_lg_u64 s[%d:%d], 0" % (s_bad, s_bad + 1))
    e("s_cselect_b32 s%d, 1, 0" % s_os)
    e("s_lshl_b32 s%d, s%d, 2" % (s_os + 1, s_w))
    e("v_mov_b32 v%d, s%d" % (tt, s_os))
    e("v_mov_b32 v%d, s%d" % (tt + 1, s_os + 1))
    g.ds("ds_write_b32 v%d, v%d offset:%d" % (tt + 1, tt, FLAGS), "tab")
    e("v_mov_b32 v20, 0")
    g.need((), ("tab",))
    e("s_barrier")
    g.ds("ds_read_b128 v[16:19], v20 offset:%d" % FLAGS, "flag")
    g.need((), ("flag",))
    e("v_or_b32 v16, v16, v17")
    e("v_or3_b32 v16, v16, v18, v19")
    e("s_nop 0")
    e("v_readfirstlane_b32 s%d, v16" % s_os)
    e("s_cmp_eq_u32 s%d, 0" % s_os)
    e("s_cbranch_scc1 L_m_fast")
    e("s_barrier")
    e("v_cmp_gt_u32 vcc, 216, v0")
    e("s_and_saveexec_b64 s[%d:%d], vcc" % (s_sv, s_sv + 1))
    for i in range(3):
        e("v_lshlrev_b32 v%d, 16, v%d" % (o4, pa + i))
        e("v_and_b32 v%d, 0xffff0000, v%d" % (o4 + 2, pa + i))
        e("v_lshlrev_b32 v%d, 16, v%d" % (o4 + 1, pa + 3 + i))
        e("v_and_b32 v%d, 0xffff0000, v%d" % (o4 + 3, pa + 3 + i))
        e("v_xor_b32 v%d, 0x80000000, v%d" % (o4 + 1, o4 + 1))
        e("v_xor_b32 v%d, 0x80000000, v%d" % (o4 + 3, o4 + 3))
        g.ds("ds_write_b128 v%d, v[%d:%d] offset:%d" % (v_tw, o4, o4 + 3, TAB + i * 3 * 1152), "tab")
        g.need((), ("tab",))
    e("s_mov_b64 exec, s[%d:%d]" % (s_sv, s_sv + 1))
    e("s_barrier")
    e("s_barrier")
    g.label("L_m_fast")
    def xfrag_reads(gg, s):
        out = []
        for mt in range(4):
            b = a_x + s * 16 + mt * 4
            out.append(("ds", "ds_read_b128 a[%d:%d], v%d offset:%d" % (b, b + 3, m_xr[s], (gg % XR) * XSL + mt * 2048), "xf%d_%d" % (gg, s)))
        return out
    def stores(mt, early=False):
        out = []
        cfg["stm"] = cfg.get("stm_early", "") if early else cfg.get("stm_late", "")
        for r in range(4):
            tq = m_tmp + r * 4
            for h in range(4):
                out.append(("v", "v_cvt_pk_bf16_f32 v%d, v%d, v%d" % (tq + h, accreg(mt, 2 * h) + r, accreg(mt, 2 * h + 1) + r)))
            out.append(("s", "s_add_u32 s%d, s%d, %d" % (s_os, s_oo, (mt * 16 + r) * 9216)))
            out.append(("vm", "buffer_store_dwordx4 v[%d:%d], v%d, s[%d:%d], s%d offen%s" % (tq, tq + 3, m_oa, S_O, S_O + 3, s_os, cfg.get("stm", "")), "st"))
        b = accreg(mt, 8)
        for rp in range(2):
            td = m_tmp + 24 + (mt * 2 + rp) % 4
            out.append(("v", "v_cvt_pk_bf16_f32 v%d, v%d, v%d" % (td, b + 2 * rp, b + 2 * rp + 1)))
            out.append(("s", "s_add_u32 s%d, s%d, %d" % (s_os, s_oo, (mt * 16 + 2 * rp) * 9216)))
            out.append(("vm", "buffer_store_short v%d, v%d, s[%d:%d], s%d offen offset:256%s" % (td, m_ob, S_O, S_O + 3, s_os, cfg.get("stm", "")), "st"))
            out.append(("s", "s_add_u32 s%d, s%d, %d" % (s_os, s_oo, (mt * 16 + 2 * rp + 1) * 9216)))
            out.append(("vm", "buffer_store_short_d16_hi v%d, v%d, s[%d:%d], s%d offen offset:256%s" % (td, m_ob, S_O, S_O + 3, s_os, cfg.get("stm", "")), "st"))
        return out
    LS = cfg.get("lastsplit", 2)
    mtsets = {1: [(0, 1, 2, 3)], 2: [(0, 1), (2, 3)], 4: [(0,), (1,), (2,), (3,)]}[LS]
    frags = [(j, s, t, (0, 1, 2, 3)) for j in range(NG - 1) for s in range(2) for t in range(T)]
    frags += [(NG - 1, s, t, ms) for ms in mtsets for s in range(2) for t in range(T)]
    def frag_read(fi):
        j, s, t, _ = frags[fi]
        b = a_fr + (fi % FR) * 4
        xv = (2 * s) ^ ((t >> 2) if t < 8 else 0)
        return ("ds", "ds_read_b128 a[%d:%d], v%d offset:%d" % (b, b + 3, m_r[xv], WB + (j % 2) * SLOT + t * 2048), "f%d" % fi)
    PF = FR - 1
    emit_items(xfrag_reads(0, 0))
    nfr = 0
    for fi in range(PF):
        emit_item(frag_read(fi)); nfr += 1
    P = []; ST = []; stdelay = 0
    prevj = -1; fl = 0; prevms = None
    for fi, (j, s, t, ms) in enumerate(frags):
        if j != prevj:
            emit_items(P); P = []
            if stamp == 1: e("s_memtime s[%d:%d]" % (STAMP0 + 2 + 2 * j, STAMP0 + 3 + 2 * j))
            P = xfrag_reads(j, 1)
            fl = 0; prevj = j
            if cfg.get("pf", 1) == 1 and j + cfg.get("pfd", 4) < NG: touch(j + cfg.get("pfd", 4), j % 4)
        if j == NG - 1 and prevms is not None and ms != prevms:
            for mt in prevms: ST += stores(mt, True)
            stdelay = 6
        prevms = ms if j == NG - 1 else None
        fb = a_fr + (fi % FR) * 4
        if fl == BARF and j + 1 < NG:
            assert nfr >= (j + 1) * 2 * T, (nfr, j)
            g.need((), ("f%d" % ((j + 1) * 2 * T - 1),))
            e("s_barrier")
            P += xfrag_reads(j + 1, 0)
        for mt in ms:
            ab = accreg(mt, t)
            accs = "v[%d:%d]" % (ab, ab + 3)
            g.need((), ("f%d" % fi, "xf%d_%d" % (j, s)))
            csrc = "0" if (j == 0 and s == 0) else accs
            xb_ = a_x + s * 16 + mt * 4
            e("v_mfma_f32_16x16x32_bf16 %s, a[%d:%d], a[%d:%d], %s" % (accs, xb_, xb_ + 3, fb, fb + 3, csrc))
            cnt = 0
            if nfr < len(frags) and nfr <= fi + PF and (frags[nfr][0] == j or fl >= BARF):
                emit_item(frag_read(nfr)); nfr += 1; cnt += 1
            while P and cnt < (2 if len(ms) == 1 else 1):
                emit_item(P.pop(0)); cnt += 1
            if stdelay: stdelay -= 1
            else:
                while ST and (cnt < 2 or ST[0][0] == "s"):
                    it = ST.pop(0); emit_item(it); cnt += (it[0] != "s")
        fl += 1
    emit_items(P)
    emit_items(ST)
    e("s_nop 7")
    e("s_nop 1")
    for mt in prevms: emit_items(stores(mt))
    if stamp: dump_stamps(cfg.get("stw", 0))
    e("s_endpgm")

    g.label("L_helper")
    g.vmq = []; g.lgq = []
    hst = [1]
    def hs():
        if stamp == 3:
            e("s_memtime s[%d:%d]" % (STAMP0 + 2 * hst[0], STAMP0 + 1 + 2 * hst[0])); hst[0] += 1
    e("s_mul_i32 s%d, s%d, 1152" % (s_xo, s_t0))
    for rb in range(1, 8):
        e("s_add_u32 s%d, s%d, %d" % (s_xo + rb, s_xo, rb * 8 * 1152))
    e("s_mul_i32 s%d, s%d, 576" % (s_q0, s_nblk))
    e("s_mov_b32 s%d, 0x4b800000" % s_c24)
    lane = h_tmp + 1; kg = h_tmp + 2; kb = h_tmp + 4; nb = h_tmp + 5; t7 = h_tmp + 7
    k8 = h_tmp + 8; nq_ = h_tmp + 9; hh = h_tmp + 10; ii = h_tmp + 11; t12 = h_tmp + 12; tl = h_tl
    e("v_and_b32 v%d, 63, v0" % lane)
    e("v_and_b32 v%d, 255, v0" % tl)
    e("v_lshrrev_b32 v%d, 4, v%d" % (kb, tl))
    e("v_and_b32 v%d, 15, v0" % nb)
    e("v_lshrrev_b32 v%d, 4, v%d" % (kg, lane))
    e("v_lshrrev_b32 v%d, 3, v%d" % (t7, lane))
    e("v_mul_u32_u24 v%d, 1152, v%d" % (h_xd[0], t7))
    e("v_and_b32 v%d, 7, v%d" % (t7, lane))
    e("v_xor_b32 v%d, v%d, v%d" % (t7, t7, kg))
    e("v_lshl_add_u32 v%d, v%d, 4, v%d" % (h_xd[0], t7, h_xd[0]))
    e("v_xor_b32 v%d, 64, v%d" % (h_xd[1], h_xd[0]))
    e("v_mul_u32_u24 v%d, %d, v%d" % (h_qb, 4 * 18432, kb))
    e("v_lshl_add_u32 v%d, v%d, 2, v%d" % (h_qb, nb, h_qb))
    e("v_add_u32 v%d, 512, v%d" % (h_qb, h_qb))
    e("v_lshrrev_b32 v%d, 5, v%d" % (k8, tl))
    e("v_and_b32 v%d, 31, v0" % nq_)
    e("v_mul_u32_u24 v%d, %d, v%d" % (h_qa, 8 * 18432, k8))
    e("v_lshl_add_u32 v%d, v%d, 4, v%d" % (h_qa, nq_, h_qa))
    pa = h_pa
    e("s_waitcnt lgkmcnt(0)")
    hs()
    srd(S_X, 4, M * K * 2); srd(S_Q, 6, K * N * 4); srd(S_SC, 8, NG * N * 2); srd(S_Z, 10, NG * N * 2)
    def qreg(slot, r, ee):
        b = h_st + slot * 36
        return b + r * 4 + ee if ee < 4 else b + 32 + r
    def load_q(j):
        slot = j % NS
        out = []
        for r in range(8):
            b = qreg(slot, r, 0)
            out.append(("s", "s_add_u32 s%d, s%d, %d" % (s_qs, s_q0, (j * 64 + r) * 18432)))
            out.append(("vm", "buffer_load_dwordx4 v[%d:%d], v%d, s[%d:%d], s%d offen%s" % (b, b + 3, h_qa, S_Q, S_Q + 3, s_qs, cfg.get("qm", "")), "q%d" % j))
        for r in range(4):
            out.append(("s", "s_add_u32 s%d, s%d, %d" % (s_qs + 1, s_q0, (j * 64 + r) * 18432)))
            out.append(("vm", "buffer_load_dword v%d, v%d, s[%d:%d], s%d offen%s" % (qreg(slot, r, 4), h_qb, S_Q, S_Q + 3, s_qs + 1, cfg.get("qm", "")), "q%d" % j))
        return out
    def dma_x(gg):
        res = []
        for rb in range(8):
            c = (gg % XR) * XSL + rb * 1024 - gg * 128
            if c >= 0: res.append(("s", "s_add_u32 m0, s%d, %d" % (s_xw, c)))
            else: res.append(("s", "s_sub_u32 m0, s%d, %d" % (s_xw, -c)))
            res.append(("s", "s_nop 0"))
            res.append(("vm", "buffer_load_dwordx4 v%d, s[%d:%d], s%d offen offset:%d%s lds" % (h_xd[rb & 1], S_X, S_X + 3, s_xo + rb, gg * 128, cfg.get("xm", "")), "x%d" % gg))
        return res
    d0 = pa + 16
    e("v_lshlrev_b32 v%d, 3, v%d" % (t7, nq_))
    e("v_lshl_add_u32 v%d, v%d, 1, 0" % (t12, nb))
    g.vm("buffer_load_dwordx2 v[%d:%d], v%d, s[%d:%d], s%d offen" % (d0, d0 + 1, t7, S_SC, S_SC + 3, s_t1), "d0")
    g.vm("buffer_load_dwordx2 v[%d:%d], v%d, s[%d:%d], s%d offen" % (d0 + 2, d0 + 3, t7, S_Z, S_Z + 3, s_t1), "d0")
    g.vm("buffer_load_ushort v%d, v%d, s[%d:%d], s%d offen offset:256" % (d0 + 4, t12, S_SC, S_SC + 3, s_t1), "d0")
    g.vm("buffer_load_ushort v%d, v%d, s[%d:%d], s%d offen offset:256" % (d0 + 5, t12, S_Z, S_Z + 3, s_t1), "d0")
    emit_items(load_q(0)); nq = 1
    emit_items(dma_x(0)); nx = 1
    if cfg.get("early", 1): emit_items(load_q(1)); nq = 2
    if cfg.get("pf", 1) == 3:
        emit_items(load_q(1)); nq = 2
        emit_items(dma_x(1)); nx = 2
        px = pa + 0; pq = pa + 1; pl = pa + 2; pr = pa + 3; pd = pa + 4
        m18, s18 = magic(18, 36 * 31 + 63)
        e("s_lshr_b32 s%d, s2, 3" % s_t2)
        e("s_lshl_b32 s%d, s%d, 6" % (s_t3, s_t2))
        e("v_add_u32 v%d, s%d, v%d" % (px, s_t3, lane))
        e("v_mul_u32_u24 v%d, 1152, v%d" % (px, px))
        e("s_mul_i32 s%d, s%d, 36" % (s_t3, s_t2))
        e("v_add_u32 v%d, s%d, v%d" % (pl, s_t3, lane))
        e("v_mul_u32_u24 v%d, %d, v%d" % (pr, m18, pl))
        e("v_lshrrev_b32 v%d, %d, v%d" % (pr, s18, pr))
        e("v_mul_u32_u24 v%d, 18, v%d" % (pq, pr))
        e("v_sub_u32 v%d, v%d, v%d" % (pl, pl, pq))
        e("v_mul_u32_u24 v%d, 18432, v%d" % (pq, pr))
        e("v_lshl_add_u32 v%d, v%d, 7, v%d" % (pq, pl, pq))
        e("s_and_b32 s%d, s2, 7" % s_t2)
        e("s_mul_i32 s%d, s%d, 2304" % (s_t2, s_t2))
        e("s_and_b32 s%d, s%d, 3" % (s_t3, s_w))
        e("s_mul_i32 s%d, s%d, %d" % (s_os, s_t3, 64 * 18432))
        e("s_add_u32 s%d, s%d, s%d" % (s_t2, s_t2, s_os))
        e("s_lshl_b32 s%d, s%d, 7" % (s_t3, s_t3))
        for rep in range(2):
            g0 = 2 + 4 * rep
            g.vm("buffer_load_dword v%d, v%d, s[%d:%d], s%d offen offset:%d" % (pd, px, S_X, S_X + 3, s_t3, g0 * 128), "pf")
            e("s_add_u32 s%d, s%d, %d" % (s_os, s_t2, g0 * 64 * 18432))
            g.vm("buffer_load_dword v%d, v%d, s[%d:%d], s%d offen" % (pd + 1, pq, S_Q, S_Q + 3, s_os), "pf")
    hs()
    e("v_lshrrev_b32 v%d, 1, v%d" % (hh, nb))
    e("v_and_b32 v%d, 1, v%d" % (t7, nb))
    e("v_lshlrev_b32 v%d, 2, v%d" % (t7, t7))
    e("v_xor_b32 v%d, v%d, v%d" % (hh, hh, t7))
    e("v_lshrrev_b32 v%d, 1, v%d" % (t7, kb))
    e("v_xor_b32 v%d, v%d, v%d" % (t7, t7, hh))
    e("v_lshlrev_b32 v%d, 4, v%d" % (t7, t7))
    e("v_lshl_add_u32 v%d, v%d, 7, v%d" % (h_wb, nb, t7))
    e("v_and_b32 v%d, 1, v%d" % (t7, kb))
    e("v_lshl_add_u32 v%d, v%d, 3, v%d" % (h_wb, t7, h_wb))
    e("v_lshrrev_b32 v%d, 1, v%d" % (ii, nq_))
    e("v_lshrrev_b32 v%d, 1, v%d" % (hh, ii))
    e("v_and_b32 v%d, 1, v%d" % (t7, ii))
    e("v_lshlrev_b32 v%d, 2, v%d" % (t7, t7))
    e("v_xor_b32 v%d, v%d, v%d" % (hh, hh, t7))
    e("v_and_b32 v%d, 1, v%d" % (t12, nq_))
    e("v_lshlrev_b32 v%d, 1, v%d" % (t7, t12))
    e("v_xor_b32 v%d, v%d, v%d" % (hh, hh, t7))
    e("v_xor_b32 v%d, v%d, v%d" % (hh, hh, k8))
    e("v_lshlrev_b32 v%d, 4, v%d" % (hh, hh))
    e("v_lshl_add_u32 v%d, v%d, 6, v%d" % (t7, t12, ii))
    e("v_lshl_add_u32 v%d, v%d, 7, v%d" % (h_wa, t7, hh))
    e("v_lshlrev_b32 v%d, 5, v%d" % (h_sa, nq_))
    e("v_lshlrev_b32 v%d, 3, v%d" % (h_sb, nb))
    sl, sh_, zl, zh = pa + 12, pa + 13, pa + 14, pa + 15
    o4 = pa + 24; tt = pa + 28
    def scale_reads(j):
        out = []
        off0 = TAB + j * 1152
        for h in range(2):
            out.append(("ds", "ds_read_b128 v[%d:%d], v%d offset:%d" % (h_sc + 4 * h, h_sc + 4 * h + 3, h_sa, off0 + 16 * h), "sc%d" % j))
        out.append(("ds", "ds_read_b64 v[%d:%d], v%d offset:%d" % (h_sc + 8, h_sc + 9, h_sb, off0 + 1024), "sc%d" % j))
        return out
    def dq_elem(generic, f, q, c1, c0, dep):
        if not generic:
            return [("v", "v_fma_mix_f32 v%d, v%d, v%d, v%d op_sel_hi:[1,0,0]" % (f, q, c1, c0)) + dep]
        return [("v", "v_cvt_f32_i32 v%d, v%d" % (f, q)) + dep,
                ("v", "v_cvt_pk_bf16_f32 v%d, 0, v%d" % (f, f)),
                ("v", "v_add_f32 v%d, v%d, v%d" % (f, f, c0)),
                ("v", "v_cvt_pk_bf16_f32 v%d, 0, v%d" % (f, f)),
                ("v", "v_mul_f32 v%d, v%d, v%d" % (f, f, c1))]
    def dequant(j, generic):
        slot = j % NS
        out = []; first = True; pend = []
        for ee in range(5):
            f = h_tmp + (ee % 2) * 8
            c1 = h_sc + 2 * ee; c0 = c1 + 1
            nr = 8 if ee < 4 else 4
            for r in range(nr):
                dep = ((("q%d" % j,), ("sc%d" % j,)),) if first else ()
                first = False
                out += dq_elem(generic, f + r, qreg(slot, r, ee), c1, c0, dep)
                if r == 1 and pend: out.append(pend.pop(0))
            for h in range(nr // 2):
                out.append(("v", "v_cvt_pk_bf16_f32 v%d, v%d, v%d" % (f + h, f + 2 * h, f + 2 * h + 1)))
            if ee < 4:
                pend.append(("ds", "ds_write_b128 v%d, v[%d:%d] offset:%d" % (h_wa, f, f + 3, WB + (j % 2) * SLOT + ee * 2048), "w%d" % j))
            else:
                pend.append(("ds", "ds_write_b64 v%d, v[%d:%d] offset:%d" % (h_wb, f, f + 1, WB + (j % 2) * SLOT + 8 * 2048), "w%d" % j))
        out += pend
        return out
    g.need(("d0",))
    hs()
    for ee in range(5):
        if ee < 4:
            sp = d0 + ee // 2; zp = d0 + 2 + ee // 2
            if ee % 2 == 0:
                e("v_lshlrev_b32 v%d, 16, v%d" % (sl, sp)); e("v_lshlrev_b32 v%d, 16, v%d" % (zl, zp))
            else:
                e("v_and_b32 v%d, 0xffff0000, v%d" % (sl, sp)); e("v_and_b32 v%d, 0xffff0000, v%d" % (zl, zp))
        else:
            e("v_lshlrev_b32 v%d, 16, v%d" % (sl, d0 + 4)); e("v_lshlrev_b32 v%d, 16, v%d" % (zl, d0 + 5))
        e("v_mul_f32 v%d, s%d, v%d" % (h_sc + 2 * ee, s_c24, sl))
        e("v_mul_f32_e64 v%d, -v%d, v%d" % (h_sc + 2 * ee + 1, zl, sl))
    g.need(("q0",))
    hs()
    D = dequant(0, False)
    V = []
    if nq < 2: V += load_q(1); nq = 2
    if nx < 2: V += dma_x(1); nx = 2
    while D:
        while V and V[0][0] == "s": emit_item(V.pop(0))
        if V: emit_item(V.pop(0))
        for _ in range(3):
            if D: emit_item(D.pop(0))
    hs()
    emit_items(V)
    hs()
    g.need(("x0",), ("w0",))
    hs()
    e("s_barrier")
    hs()
    e("v_mov_b32 v%d, 0" % tt)
    g.ds("ds_read_b128 v[%d:%d], v%d offset:%d" % (o4, o4 + 3, tt, FLAGS), "flag")
    if nq < 2: emit_items(load_q(1)); nq = 2
    if nx < 2: emit_items(dma_x(1)); nx = 2
    g.need((), ("flag",))
    e("v_or_b32 v%d, v%d, v%d" % (o4, o4, o4 + 1))
    e("v_or3_b32 v%d, v%d, v%d, v%d" % (o4, o4, o4 + 2, o4 + 3))
    e("s_nop 0")
    e("v_readfirstlane_b32 s%d, v%d" % (s_os, o4))
    e("s_cmp_lg_u32 s%d, 0" % s_os)
    e("s_cbranch_scc1 L_h_generic")
    saved = (list(g.vmq), list(g.lgq), nq, nx)
    def hbody(generic):
        g.vmq, g.lgq = list(saved[0]), list(saved[1])
        nq, nx = saved[2], saved[3]
        if generic:
            e("s_barrier")
            e("s_barrier")
            emit_items(scale_reads(0))
            emit_items(dequant(0, True))
            g.need((), ("w0",))
            e("s_barrier")
        emit_items(scale_reads(1))
        V = []
        for j in range(NG - 1):
            if stamp == 1 and not generic: e("s_memtime s[%d:%d]" % (STAMP0 + 2 + 2 * j, STAMP0 + 3 + 2 * j))
            if stamp == 3 and not generic and j in (0, 1): hs()
            D = dequant(j + 1, generic)
            while True:
                added = False
                if nq < NG and nq <= j + NS and nq <= nx + 0:
                    V += load_q(nq); nq += 1; added = True
                elif nx < NG and nx <= j + 2:
                    V += dma_x(nx); nx += 1; added = True
                elif nq < NG and nq <= j + NS:
                    V += load_q(nq); nq += 1; added = True
                if not added: break
            per = cfg.get("ratio", 3) * (5 if generic else 1)
            while any(it[0] == "vm" and it[2] == "q%d" % (j + 1) for it in V):
                emit_item(V.pop(0))
            while D:
                while V and V[0][0] == "s": emit_item(V.pop(0))
                if V: emit_item(V.pop(0))
                for _ in range(per):
                    if D: emit_item(D.pop(0))
            while any(it[0] == "vm" and it[2] == "x%d" % (j + 1) for it in V):
                emit_item(V.pop(0))
            if j == NG - 2: emit_items(V); V = []
            if j + 2 < NG: emit_items(scale_reads(j + 2))
            g.need(("x%d" % (j + 1),), ("w%d" % (j + 1),))
            e("s_barrier")
        if stamp and not generic: dump_stamps(cfg.get("stw", 0))
        e("s_endpgm")
    hbody(False)
    g.label("L_h_generic")
    hbody(True)
    g.label("L_end")
    e("s_endpgm")
    tail = ['.section .rodata,"a"', ".p2align 6", ".amdhsa_kernel %s" % KNAME,
            "  .amdhsa_next_free_vgpr %d" % (ACCOFF + NAG), "  .amdhsa_next_free_sgpr 102", "  .amdhsa_accum_offset %d" % ACCOFF,
            "  .amdhsa_group_segment_fixed_size 0", "  .amdhsa_kernarg_size 56", "  .amdhsa_user_sgpr_count 2",
            "  .amdhsa_user_sgpr_kernarg_segment_ptr 1", "  .amdhsa_system_sgpr_workgroup_id_x 1",
            "  .amdhsa_float_denorm_mode_32 3", "  .amdhsa_float_denorm_mode_16_64 3", ".end_amdhsa_kernel"]
    return "\n".join(hdr + g.L + tail) + "\n", ACCOFF + NAG, LDS_BYTES

if __name__ == "__main__":
    ap = argparse.ArgumentParser()
    ap.add_argument("--ns", type=int, default=3)
    ap.add_argument("--xr", type=int, default=3)
    ap.add_argument("--fr", type=int, default=6)
    ap.add_argument("--barf", type=int, default=14)
    ap.add_argument("--prio", type=int, default=1)
    ap.add_argument("--dis", default="")
    ap.add_argument("--pf", type=int, default=0)
    ap.add_argument("--early", type=int, default=0)
    ap.add_argument("--stm", default="")
    ap.add_argument("--qm", default="")
    ap.add_argument("--perm", type=int, default=0)
    ap.add_argument("--map", type=int, default=1)
    ap.add_argument("--stme", default="")
    ap.add_argument("--xm", default="")
    ap.add_argument("--tlb", type=int, default=0)
    ap.add_argument("--pfd", type=int, default=4)
    ap.add_argument("--ratio", type=int, default=3)
    ap.add_argument("--lastsplit", type=int, default=2)
    ap.add_argument("--stamp", type=int, default=0)
    ap.add_argument("--stw", type=int, default=0)
    ap.add_argument("-o", default="standalone__weight_only_int_quip_2__prompt.s")
    a = ap.parse_args()
    cfg = dict(ns=a.ns, xr=a.xr, fr=a.fr, barf=a.barf, prio=a.prio, dis=a.dis, pf=a.pf, early=a.early, perm=a.perm, map=a.map, stm_early=(" " + a.stme.replace("+", " ")) if a.stme else "", stm_late=(" " + a.stm.replace("+", " ")) if a.stm else "", qm=(" " + a.qm.replace("+", " ")) if a.qm else "", xm=(" " + a.xm.replace("+", " ")) if a.xm else "", stm=(" " + a.stm.replace("+", " ")) if a.stm else "", tlb=a.tlb, pfd=a.pfd, ratio=a.ratio, lastsplit=a.lastsplit, stamp=a.stamp, stw=a.stw)
    s, nvg, lds = build(cfg)
    open(a.o, "w").write(s)
    print("regs", nvg, "LDS", lds, "lines", s.count("\n"))
```
